```python
import torch

def _softmax(x, axis=-1):
    return torch.softmax(x, dim=axis)
def _gelu(x):
    return torch.nn.functional.gelu(x, approximate="tanh")
def _silu(x):
    return torch.nn.functional.silu(x)
def _sigmoid(x):
    return torch.sigmoid(x)
def _layernorm(x, axis=-1, eps=1e-5):
    m = x.mean(dim=axis, keepdim=True)
    v = x.var(dim=axis, keepdim=True, unbiased=False)
    return (x - m) / torch.sqrt(v + eps)
def _scatter_add(tgt, idx, src, axis=0):
    return tgt.clone().index_add_(axis, idx, src)
def _segment_sum(src, seg, n):
    out = torch.zeros((n,) + src.shape[1:], dtype=src.dtype)
    return out.index_add_(0, seg, src)
def _pad(x, pw):
    flat = tuple(v for pair in reversed(pw) for v in pair)
    return torch.nn.functional.pad(x, flat)

kernel_name = 'gated_mix__ssm_conv_s5__swiglu_ffn__prompt'

def setup_inputs():

    _w = (lambda a: (lambda t: t.to(torch.bfloat16) if t.is_floating_point() else t)(torch.as_tensor(a)))
    def _A_setup():
        B, S, D = 1, 2048, 512
        P = D
        Lambda_re = -0.5 * (lambda _x: torch.exp(torch.as_tensor(_x)))((lambda *s: torch.randn(*s, dtype=torch.bfloat16) * 0.2)(P))
        Lambda_im = (lambda *s: torch.randn(*s, dtype=torch.bfloat16) * 0.4)(P) * 1.0
        B_re = (lambda *s: torch.randn(*s, dtype=torch.bfloat16) * 0.2)(P, D) * (D ** -0.5)
        B_im = (lambda *s: torch.randn(*s, dtype=torch.bfloat16) * 0.2)(P, D) * (D ** -0.5)
        C_re = (lambda *s: torch.randn(*s, dtype=torch.bfloat16) * 0.2)(D, P) * (P ** -0.5)
        C_im = (lambda *s: torch.randn(*s, dtype=torch.bfloat16) * 0.2)(D, P) * (P ** -0.5)
        log_dt = (lambda *s: torch.randn(*s, dtype=torch.bfloat16) * 0.2)(P) * 0.3 - 2.0
        Dskip = (lambda *s: torch.randn(*s, dtype=torch.bfloat16) * 0.05)(D)
        return {
            "x": _w((lambda *s: torch.randn(*s, dtype=torch.bfloat16) * 0.05)(B, S, D)),
            "Lambda_re": _w(Lambda_re),
            "Lambda_im": _w(Lambda_im),
            "B_re": _w(B_re),
            "B_im": _w(B_im),
            "C_re": _w(C_re),
            "C_im": _w(C_im),
            "log_dt": _w(log_dt),
            "Dskip": _w(Dskip),
        }
    _A_in = _A_setup()

    def _B_setup():
        B, S, D, F = 1, 2048, 512, 1792
        return {
            "x": _w((lambda *s: torch.randn(*s, dtype=torch.bfloat16) * 0.05)(B, S, D)),
            "w_gate": _w((lambda *s: torch.randn(*s, dtype=torch.bfloat16) * 0.05)(D, F)),
            "w_up": _w((lambda *s: torch.randn(*s, dtype=torch.bfloat16) * 0.05)(D, F)),
            "w_down": _w((lambda *s: torch.randn(*s, dtype=torch.bfloat16) * 0.05)(F, D)),
        }
    _B_in = _B_setup()

    return {
        "A_x": _A_in["x"],
        "A_Lambda_re": _A_in["Lambda_re"],
        "A_Lambda_im": _A_in["Lambda_im"],
        "A_B_re": _A_in["B_re"],
        "A_B_im": _A_in["B_im"],
        "A_C_re": _A_in["C_re"],
        "A_C_im": _A_in["C_im"],
        "A_log_dt": _A_in["log_dt"],
        "A_Dskip": _A_in["Dskip"],
        "B_x": _B_in["x"],
        "B_w_gate": _B_in["w_gate"],
        "B_w_up": _B_in["w_up"],
        "B_w_down": _B_in["w_down"],
        "gate_w": _w((lambda *s: torch.randn(*s, dtype=torch.bfloat16) * 0.05)(512) * 16.0),
    }

def reference(A_x, A_Lambda_re, A_Lambda_im, A_B_re, A_B_im, A_C_re, A_C_im, A_log_dt, A_Dskip, B_x, B_w_gate, B_w_up, B_w_down, gate_w):
    def _A_ref(x, Lambda_re, Lambda_im, B_re, B_im, C_re, C_im, log_dt, Dskip):
        Bsz, L, H = x.shape
        Lam = Lambda_re + 1j * Lambda_im
        Bmat = B_re + 1j * B_im
        Cmat = C_re + 1j * C_im
        dt = torch.exp(log_dt)
        Lam_bar = torch.exp(dt * Lam)
        B_bar = ((Lam_bar - 1.0) / Lam)[:, None] * Bmat
        Bu = torch.einsum("bld,pd->blp", x + 0j, B_bar)
        h = torch.zeros_like(Bu[:, 0, :])
        hs = []
        for t in range(L):
            h = Lam_bar[None, :] * h + Bu[:, t, :]
            hs.append(h)
        hseq = torch.stack(hs, 1)
        y = 2.0 * torch.einsum("blp,dp->bld", hseq, Cmat).real + x * Dskip[None, None, :]
        return y

    def _B_ref(x, w_gate, w_up, w_down):
        g = _silu(x @ w_gate)
        u = x @ w_up
        return (g * u) @ w_down

    x = A_x
    g = _sigmoid((x * gate_w).sum(-1, keepdims=True))
    a = _A_ref(x, A_Lambda_re, A_Lambda_im, A_B_re, A_B_im, A_C_re, A_C_im, A_log_dt, A_Dskip)
    b = _B_ref(x, B_w_gate, B_w_up, B_w_down)
    return g * a + (1 - g) * b
```

```python
import re

_REG_RE = re.compile(r"(?<![\w.])([vas])(?:(\d+)|\[(\d+):(\d+)\])(?![\w])")

TRANS = ("v_exp_f32", "v_log_f32", "v_rcp_f32", "v_rsq_f32", "v_sqrt_f32", "v_sin_f32", "v_cos_f32")


def regs_of(text):
    out = []
    for m in _REG_RE.finditer(text):
        k = m.group(1)
        if m.group(2) is not None:
            out.append((k, int(m.group(2))))
        else:
            for i in range(int(m.group(3)), int(m.group(4)) + 1):
                out.append((k, i))
    if re.search(r"\bvcc\b", text):
        out.append(("s", "vcc"))
    if re.search(r"\bm0\b", text):
        out.append(("s", "m0"))
    if re.search(r"\bexec\b", text):
        out.append(("s", "exec"))
    return out


def R(kind, base, n=1):
    return f"{kind}{base}" if n == 1 else f"{kind}[{base}:{base + n - 1}]"


def v(base, n=1):
    return R("v", base, n)


def a(base, n=1):
    return R("a", base, n)


def s(base, n=1):
    return R("s", base, n)


class Tok:
    __slots__ = ("q", "idx")

    def __init__(self, q, idx):
        self.q = q
        self.idx = idx


class Asm:
    def __init__(self):
        self.lines = []
        self.pos = 0
        self.vm_issued = 0
        self.vm_done = 0
        self.lg_issued = 0
        self.lg_done = 0
        self.smem_out = False
        self.pend = {}
        self.last = {}
        self.mfma_c_read = {}
        self.store_data = {}
        self.n_inst = 0
        self.n_nop = 0

    def raw(self, text):
        self.lines.append(text)

    def comment(self, text):
        self.lines.append("    ; " + text)

    def label(self, name):
        self.lines.append(name + ":")

    def _put(self, text, states=1):
        self.lines.append("    " + text)
        self.pos += states
        self.n_inst += 1

    def nop(self, n):
        while n > 0:
            k = min(n, 16)
            self._put(f"s_nop {k - 1}", k)
            self.n_nop += 1
            n -= k

    def wait(self, vm=None, lg=None):
        parts = []
        if vm is not None:
            vm = min(vm, 63)
            if self.vm_issued - self.vm_done > vm:
                parts.append(f"vmcnt({vm})")
                self.vm_done = self.vm_issued - vm
        if lg is not None:
            if self.smem_out:
                lg = 0
            lg = min(lg, 15)
            if self.lg_issued - self.lg_done > lg or (self.smem_out and lg == 0):
                parts.append(f"lgkmcnt({lg})")
                self.lg_done = self.lg_issued - lg
                if lg == 0:
                    self.smem_out = False
        if parts:
            self._put("s_waitcnt " + " ".join(parts))

    def wait_tok(self, *toks):
        vm = lg = None
        for t in toks:
            if t is None:
                continue
            if t.q == "vm":
                if t.idx >= self.vm_done:
                    n = self.vm_issued - t.idx - 1
                    vm = n if vm is None else min(vm, n)
            else:
                if t.idx >= self.lg_done:
                    n = self.lg_issued - t.idx - 1
                    lg = n if lg is None else min(lg, n)
        self.wait(vm, lg)

    def forget(self):
        self.wait(0, 0)
        self.nop(16)

    def emit(self, text, defs, uses, cls):
        toks = [self.pend[r] for r in list(defs) + list(uses) if r in self.pend]
        if toks:
            self.wait_tok(*toks)
        for r in list(defs) + list(uses):
            t = self.pend.get(r)
            if t is not None:
                done = self.vm_done if t.q == "vm" else self.lg_done
                if t.idx < done:
                    del self.pend[r]
        need = 0

        def req(p, n):
            nonlocal need
            d = self.pos - p - 1
            if d < n:
                need = max(need, n - d)

        is_valu = cls in ("valu", "trans", "perm", "dpp", "rfl")
        for r in uses:
            lw = self.last.get(r)
            if lw is None:
                continue
            p, c = lw
            if c == "mfma":
                if cls == "mfma":
                    pass
                else:
                    req(p, 12)
            elif c in ("valu", "trans", "perm", "dpp"):
                if r[0] == "s":
                    if is_valu:
                        req(p, 2)
                    elif cls in ("vmem",):
                        req(p, 5)
                    else:
                        req(p, 2)
                else:
                    if cls == "mfma":
                        req(p, 2)
                    elif cls in ("perm", "dpp"):
                        req(p, 2)
                    elif cls == "rfl":
                        req(p, 1)
                    if c == "trans" and cls != "trans":
                        req(p, 1)
            elif c == "rfl":
                if is_valu:
                    req(p, 2)
                elif cls == "vmem":
                    req(p, 5)
                else:
                    req(p, 2)
            elif c == "salu":
                if r == ("s", "m0") and cls == "vmem":
                    req(p, 1)
        for r in defs:
            lw = self.last.get(r)
            if lw is not None and lw[1] == "mfma" and cls != "mfma":
                req(lw[0], 12)
            if r in self.mfma_c_read and cls != "mfma":
                req(self.mfma_c_read[r], 7)
            if r in self.store_data:
                req(self.store_data[r], 2)
        if need:
            self.nop(need)
        p = self.pos
        self._put(text)
        for r in defs:
            self.last[r] = (p, cls)
        return p

    def salu(self, text):
        op, _, rest = text.partition(" ")
        ops = [x.strip() for x in rest.split(",")]
        if op.startswith("s_cmp") or op.startswith("s_cbranch") or op in ("s_branch", "s_barrier", "s_sleep", "s_setprio", "s_endpgm"):
            defs, uses = [], regs_of(rest)
        else:
            defs, uses = regs_of(ops[0]), regs_of(",".join(ops[1:]))
        self.emit(text, defs, uses, "salu")

    def smem(self, text):
        op, _, rest = text.partition(" ")
        ops = [x.strip() for x in rest.split(",")]
        defs, uses = regs_of(ops[0]), regs_of(",".join(ops[1:]))
        self.emit(text, [], uses, "smem")
        t = Tok("lg", self.lg_issued)
        self.lg_issued += 1
        self.smem_out = True
        for r in defs:
            self.pend[r] = t
            self.last.pop(r, None)
        return t

    def valu(self, text):
        op, _, rest = text.partition(" ")
        ops = [x.strip() for x in rest.split(",")]
        cls = "valu"
        base = op.replace("_e32", "").replace("_e64", "")
        if base in TRANS:
            cls = "trans"
        if "permlane" in op:
            rr = regs_of(rest)
            self.emit(text, rr, rr, "perm")
            return
        if "dpp" in op or "row_" in rest or "quad_perm" in rest:
            cls = "dpp"
        if op.startswith("v_readfirstlane") or op.startswith("v_readlane"):
            self.emit(text, regs_of(ops[0]), regs_of(",".join(ops[1:])), "rfl")
            return
        defs = regs_of(ops[0])
        uses = regs_of(",".join(ops[1:]))
        if op.startswith("v_add_co") or op.startswith("v_addc_co") or op.startswith("v_sub_co"):
            defs += regs_of(ops[1])
            uses = regs_of(",".join(ops[2:]))
        if op.startswith("v_fmac") or op.startswith("v_pk_fmac") or cls == "dpp":
            uses += defs
        if op.startswith("v_cndmask") and len(ops) == 3:
            uses.append(("s", "vcc"))
        self.emit(text, defs, uses, cls)

    def mfma(self, d, A, B, C=None, op="v_mfma_f32_32x32x16_bf16"):
        if C is None:
            C = d
        dr, ar, br, cr = regs_of(d), regs_of(A), regs_of(B), regs_of(C)
        need = 0
        for r in ar + br:
            lw = self.last.get(r)
            if lw is not None and lw[1] == "mfma":
                dd = self.pos - lw[0] - 1
                need = max(need, 12 - dd)
        if C != d:
            for r in cr + dr:
                lw = self.last.get(r)
                if lw is not None and lw[1] == "mfma":
                    dd = self.pos - lw[0] - 1
                    need = max(need, 10 - dd)
        if need > 0:
            self.nop(need)
        p = self.emit(f"{op} {d}, {A}, {B}, {C}", dr, ar + br + cr, "mfma")
        for r in cr:
            self.mfma_c_read[r] = p

    def ds_read(self, text):
        op, _, rest = text.partition(" ")
        ops = [x.strip() for x in rest.split(",")]
        defs, uses = regs_of(ops[0]), regs_of(",".join(ops[1:]))
        self.emit(text, defs, uses, "ds")
        t = Tok("lg", self.lg_issued)
        self.lg_issued += 1
        for r in defs:
            self.pend[r] = t
            self.last.pop(r, None)
        return t

    def ds_write(self, text):
        op, _, rest = text.partition(" ")
        self.emit(text, [], regs_of(rest), "ds")
        t = Tok("lg", self.lg_issued)
        self.lg_issued += 1
        return t

    def vload(self, text):
        op, _, rest = text.partition(" ")
        ops = [x.strip() for x in rest.split(",")]
        defs, uses = regs_of(ops[0]), regs_of(",".join(ops[1:]))
        self.emit(text, defs, uses, "vmem")
        t = Tok("vm", self.vm_issued)
        self.vm_issued += 1
        for r in defs:
            self.pend[r] = t
            self.last.pop(r, None)
        return t

    def vdma(self, text):
        op, _, rest = text.partition(" ")
        self.emit(text, [], regs_of(rest) + [("s", "m0")], "vmem")
        t = Tok("vm", self.vm_issued)
        self.vm_issued += 1
        return t

    def vstore(self, text, data):
        op, _, rest = text.partition(" ")
        p = self.emit(text, [], regs_of(rest), "vmem")
        if "x4" in op or "x3" in op:
            for r in regs_of(data):
                self.store_data[r] = p
        t = Tok("vm", self.vm_issued)
        self.vm_issued += 1
        return t

    def stamp(self, i, real=False):
        if not getattr(self, "stamps", False):
            return
        op = "s_memrealtime" if real else "s_memtime"
        self.smem(f"{op} s[{80+2*i}:{81+2*i}]")

    def dump_stamps(self, n, s_ws, off, s_wave, vtmp):
        if not getattr(self, "stamps", False):
            return
        self.wait(lg=0)
        self.salu(f"s_lshl_b32 s76, s2, 2")
        self.salu(f"s_add_u32 s76, s76, s{s_wave}")
        self.salu(f"s_lshl_b32 s76, s76, 6")
        self.salu(f"s_add_u32 s76, s76, {off}")
        self.salu(f"s_add_u32 s78, s{s_ws}, s76")
        self.salu(f"s_addc_u32 s79, s{s_ws+1}, 0")
        self.valu(f"v_mov_b32 v{vtmp+1}, 0")
        for i in range(n):
            self.valu(f"v_mov_b32 v{vtmp}, s{80+2*i}")
            self.vstore(f"global_store_dword v{vtmp+1}, v{vtmp}, s[78:79] offset:{4*i}", f"v{vtmp}")

    def barrier(self):
        self._put("s_barrier")

    def text(self):
        return "\n".join(self.lines) + "\n"
```

```python
from asmgen import Asm, v, a, s
from gen_k3 import WS_A2, WS_W2, WS_G, WS_E, TILE_BYTES

SLOT = 36864
LDS_T = 4 * SLOT
LDS_EX = 32768
LOG2E = "0x3fb8aa3b"
NLOG2E = "0xbfb8aa3b"
INV2PI = "0x3e22f983"


def gen_k1(name="k1_kernel", stamps=False, fill_p1=3, fill_p2=4, rot=True):
    A = Asm()
    A.stamps = stamps
    A.raw(f".globl {name}\n.p2align 8\n.type {name},@function\n{name}:")
    tail = []
    P_X, P_LRE, P_LIM, P_BRE, P_BIM, P_CRE, P_CIM, P_LDT = 4, 6, 8, 10, 12, 14, 16, 18
    P_WG, P_WU, P_WD, P_GW = 20, 22, 24, 26
    P_DBG, P_WS = 28, 30
    SRD_X, SRD_B, SRD_W, SRD_A2, SRD_W2, SRD_E, SRD_DBG, SRD_WD = 32, 36, 40, 44, 48, 52, 56, 60
    sW, sI, sJJ, sC, sJ, sROT = 64, 65, 66, 67, 68, 69
    sT0, sT1, sT2, sT3 = 70, 71, 72, 73
    sSX, sSW = 74, 75
    sFB, sFA = 3, 100
    sCNT = 101
    sWANT = 4
    sM0X, sM0B, sM0W = 8, 9, 10
    sFT = 11
    sFA0 = 13
    sV = 20

    A.salu("s_cmp_ge_u32 s2, 256")
    A.salu(f"s_cbranch_scc1 {name}_end")
    A.stamp(0, True)
    A.stamp(1)
    A.smem("s_load_dwordx16 s[4:19], s[0:1], 0")
    A.smem("s_load_dwordx8 s[20:27], s[0:1], 80")
    A.smem("s_load_dwordx4 s[28:31], s[0:1], 120")
    S0, S1, BJ0, BJ1, B2, PA0, PA1 = 0, 16, 32, 48, 64, 80, 96
    FB = 112
    XA = 136
    SA = 152
    BA = 160
    AA = 168
    DX = 172
    DB = 176
    DW = 178
    DA = 181
    vL = 185
    LAM, L16, L128, LS, COEF = 186, 188, 190, 192, 194
    vST = 196
    vEXW, vEXR, vEO, vTW, vTR, vSS = 198, 199, 200, 201, 202, 203
    vSEG = 204
    PFX = 206
    T = 208
    EL = XA

    A.valu(f"v_lshrrev_b32 {v(T)}, 6, v0")
    A.valu(f"v_and_b32 {v(vL)}, 63, v0")
    A.valu(f"v_readfirstlane_b32 {s(sW)}, {v(T)}")
    A.salu(f"s_and_b32 {s(sT0)}, s2, 7")
    A.salu(f"s_lshr_b32 {s(sT1)}, s2, 3")
    A.salu(f"s_and_b32 {s(sC)}, {s(sT0)}, 1")
    A.salu(f"s_lshl_b32 {s(sC)}, {s(sC)}, 3")
    A.salu(f"s_and_b32 {s(sT2)}, {s(sT1)}, 7")
    A.salu(f"s_add_u32 {s(sC)}, {s(sC)}, {s(sT2)}")
    A.salu(f"s_lshr_b32 {s(sJ)}, {s(sT0)}, 1")
    A.salu(f"s_lshl_b32 {s(sJ)}, {s(sJ)}, 2")
    A.salu(f"s_lshr_b32 {s(sT2)}, {s(sT1)}, 3")
    A.salu(f"s_add_u32 {s(sJ)}, {s(sJ)}, {s(sT2)}")
    if rot:
        A.salu(f"s_lshl_b32 {s(sROT)}, {s(sJ)}, 1")
        A.salu(f"s_add_u32 {s(sROT)}, {s(sROT)}, {s(sC)}")
    else:
        A.salu(f"s_mov_b32 {s(sROT)}, 0")
    A.salu(f"s_lshr_b32 {s(sI)}, {s(sW)}, 1")
    A.salu(f"s_and_b32 {s(sJJ)}, {s(sW)}, 1")
    A.salu(f"s_mul_i32 {s(sFB)}, {s(sJ)}, 112")
    A.salu(f"s_add_u32 {s(sFA)}, {s(sFB)}, 63")
    A.salu(f"s_and_b32 {s(sFA)}, {s(sFA)}, 0xffffffc0")

    rr, sg, t2, t3, t4, t5 = T, T + 1, T + 2, T + 3, T + 4, T + 5
    A.valu(f"v_lshrrev_b32 {v(rr)}, 3, {v(vL)}")
    A.valu(f"v_and_b32 {v(sg)}, 7, {v(vL)}")
    A.valu(f"v_lshrrev_b32 {v(t2)}, 4, {v(vL)}")
    A.valu(f"v_xor_b32 {v(t2)}, {v(t2)}, {v(sg)}")
    A.valu(f"v_lshlrev_b32 {v(t2)}, 4, {v(t2)}")
    A.valu(f"v_xor_b32 {v(t3)}, 64, {v(t2)}")
    A.valu(f"v_lshrrev_b32 {v(t4)}, 5, {v(vL)}")
    A.valu(f"v_lshlrev_b32 {v(t4)}, 4, {v(t4)}")
    A.valu(f"v_and_b32 {v(t5)}, 3, {v(rr)}")
    A.valu(f"v_add_u32 {v(t4)}, {v(t4)}, {v(t5)}")
    A.salu(f"s_lshl_b32 {s(sT0)}, {s(sC)}, 7")
    A.salu(f"s_lshl_b32 {s(sT1)}, {s(sW)}, 5")
    A.salu(f"s_add_u32 {s(sT0)}, {s(sT0)}, {s(sT1)}")
    A.valu(f"v_add_u32 {v(t4)}, {s(sT0)}, {v(t4)}")
    A.valu(f"v_lshlrev_b32 {v(t4)}, 10, {v(t4)}")
    for e in range(4):
        A.valu(f"v_add_u32 {v(DX+e)}, {v(t4)}, {v(t3 if e & 1 else t2)}")
        if e:
            A.valu(f"v_add_u32 {v(DX+e)}, {3072*e}, {v(DX+e)}")
    A.salu(f"s_lshl_b32 {s(sT0)}, {s(sJ)}, 5")
    A.salu(f"s_lshl_b32 {s(sT1)}, {s(sI)}, 4")
    A.salu(f"s_add_u32 {s(sT0)}, {s(sT0)}, {s(sT1)}")
    A.valu(f"v_add_u32 {v(t4)}, {s(sT0)}, {v(rr)}")
    A.valu(f"v_lshlrev_b32 {v(t4)}, 10, {v(t4)}")
    A.valu(f"v_add_u32 {v(DB)}, {v(t4)}, {v(t2)}")
    A.valu(f"v_add_u32 {v(DB+1)}, {v(t4)}, {v(t3)}")
    A.valu(f"v_add_u32 {v(DB+1)}, {7168}, {v(DB+1)}")
    A.salu(f"s_and_b32 {s(sT2)}, {s(sJ)}, 3")
    A.salu(f"s_lshl_b32 {s(sT3)}, {s(sI)}, 2")
    A.salu(f"s_mul_i32 {s(sT0)}, {s(sJJ)}, 96")
    for e in range(3):
        A.valu(f"v_lshrrev_b32 {v(t4)}, 1, {v(vL)}")
        A.valu(f"v_add_u32 {v(t4)}, {s(sT0)}, {v(t4)}")
        if e:
            A.valu(f"v_add_u32 {v(t4)}, {32*e}, {v(t4)}")
        A.valu(f"v_xor_b32 {v(t4)}, {s(sT3)}, {v(t4)}")
        A.valu(f"v_mul_u32_u24 {v(t5)}, 171, {v(t4)}")
        A.valu(f"v_lshrrev_b32 {v(t5)}, 9, {v(t5)}")
        A.valu(f"v_mul_u32_u24 {v(T+6)}, 3, {v(t5)}")
        A.valu(f"v_sub_u32 {v(t4)}, {v(t4)}, {v(T+6)}")
        A.valu(f"v_cmp_gt_u32 vcc, {s(sT2)}, {v(t4)}")
        A.valu(f"v_lshlrev_b32 {v(t4)}, 5, {v(t4)}")
        A.valu(f"v_add_u32 {v(T+6)}, 128, {v(t4)}")
        A.valu(f"v_cndmask_b32 {v(t4)}, {v(T+6)}, {v(t4)}, vcc")
        A.valu(f"v_mul_u32_u24 {v(t5)}, 3584, {v(t5)}")
        A.valu(f"v_add_u32 {v(t4)}, {v(t4)}, {v(t5)}")
        A.valu(f"v_and_b32 {v(t5)}, 1, {v(vL)}")
        A.valu(f"v_lshl_add_u32 {v(t4)}, {v(t5)}, 4, {v(t4)}")
        A.salu(f"s_lshl_b32 {s(sT1)}, {s(sFB)}, 1")
        A.valu(f"v_add_u32 {v(DW+e)}, {s(sT1)}, {v(t4)}")
        if e:
            A.valu(f"v_subrev_u32 {v(DW+e)}, {1024*e}, {v(DW+e)}")

    def srd(d, plo, size, add=None):
        if add is None:
            A.salu(f"s_mov_b32 {s(d)}, {s(plo)}")
            A.salu(f"s_mov_b32 {s(d+1)}, {s(plo+1)}")
        else:
            A.salu(f"s_add_u32 {s(d)}, {s(plo)}, {add}")
            A.salu(f"s_addc_u32 {s(d+1)}, {s(plo+1)}, 0")
        A.salu(f"s_mov_b32 {s(d+2)}, {size}")
        A.salu(f"s_mov_b32 {s(d+3)}, 0x20000")

    srd(SRD_X, P_X, 2048 * 1024)
    A.stamp(2)
    A.salu(f"s_cmp_eq_u32 {s(sJJ)}, 0")
    A.salu(f"s_cselect_b32 {s(SRD_B)}, {s(P_BRE)}, {s(P_BIM)}")
    A.salu(f"s_cselect_b32 {s(SRD_B+1)}, {s(P_BRE+1)}, {s(P_BIM+1)}")
    A.salu(f"s_mov_b32 {s(SRD_B+2)}, {512*1024}")
    A.salu(f"s_mov_b32 {s(SRD_B+3)}, 0x20000")
    A.salu(f"s_cmp_eq_u32 {s(sI)}, 0")
    A.salu(f"s_cselect_b32 {s(SRD_W)}, {s(P_WG)}, {s(P_WU)}")
    A.salu(f"s_cselect_b32 {s(SRD_W+1)}, {s(P_WG+1)}, {s(P_WU+1)}")
    A.salu(f"s_mov_b32 {s(SRD_W+2)}, {512*3584}")
    A.salu(f"s_mov_b32 {s(SRD_W+3)}, 0x20000")
    A.salu(f"s_lshl_b32 {s(sT0)}, {s(sJ)}, 12")
    A.salu(f"s_add_u32 {s(sT0)}, {s(sT0)}, {WS_E}")
    srd(SRD_E, P_WS, 4096, s(sT0))

    A.salu(f"s_sub_u32 {s(sT0)}, 15, {s(sC)}")
    A.salu(f"s_lshl_b32 {s(sT0)}, {s(sT0)}, 8")
    A.valu(f"v_lshl_add_u32 {v(t4)}, v0, 3, {s(sT0)}")
    A.valu(f"v_cmp_gt_u32 vcc, 32, v0")
    A.valu(f"v_mov_b32 {v(t5)}, 0x10000")
    A.valu(f"v_mov_b32 {v(T+6)}, -1")
    A.valu(f"v_mov_b32 {v(T+7)}, -1")
    A.valu(f"v_cndmask_b32 {v(t4)}, {v(t5)}, {v(t4)}, vcc")
    A.vstore(f"buffer_store_dwordx2 {v(T+6,2)}, {v(t4)}, {s(SRD_E,4)}, 0 offen sc1", v(T + 6, 2))

    PRM = T + 8
    A.salu(f"s_lshl_b32 {s(sT0)}, {s(sJ)}, 5")
    A.salu(f"s_lshl_b32 {s(sT1)}, {s(sJJ)}, 4")
    A.salu(f"s_add_u32 {s(sT0)}, {s(sT0)}, {s(sT1)}")
    A.valu(f"v_and_b32 {v(t4)}, 15, {v(vL)}")
    A.valu(f"v_add_u32 {v(t4)}, {s(sT0)}, {v(t4)}")
    A.valu(f"v_lshlrev_b32 {v(t4)}, 1, {v(t4)}")
    A.vload(f"global_load_ushort {v(PRM)}, {v(t4)}, {s(P_LRE,2)}")
    A.vload(f"global_load_ushort {v(PRM+1)}, {v(t4)}, {s(P_LIM,2)}")
    A.vload(f"global_load_ushort {v(PRM+2)}, {v(t4)}, {s(P_LDT,2)}")

    A.salu(f"s_lshl_b32 {s(sM0X)}, {s(sW)}, 12")
    A.salu(f"s_lshl_b32 {s(sM0B)}, {s(sW)}, 11")
    A.salu(f"s_add_u32 {s(sM0B)}, {s(sM0B)}, 16384")
    A.salu(f"s_mul_i32 {s(sM0W)}, {s(sW)}, 3072")
    A.salu(f"s_add_u32 {s(sM0W)}, {s(sM0W)}, 24576")

    stage_tok = {}

    def kb_scalars(beta):
        A.salu(f"s_add_u32 {s(sT0)}, {s(sROT)}, {beta}")
        A.salu(f"s_and_b32 {s(sT0)}, {s(sT0)}, 7")
        A.salu(f"s_lshl_b32 {s(sSX)}, {s(sT0)}, 7")
        A.salu(f"s_mul_i32 {s(sSW)}, {s(sT0)}, {64*3584}")

    def dma_stage(beta):
        slot = (beta & 3) * SLOT
        out = [lambda: kb_scalars(beta)]

        def grp(m0reg, regs, srd_, soff, last=False):
            def f0():
                A.salu(f"s_add_u32 m0, {s(m0reg)}, {slot}")
            out.append(f0)
            for e, r in enumerate(regs):
                def f(e=e, r=r):
                    o = f" offset:{1024*e}" if e else ""
                    t = A.vdma(f"buffer_load_dwordx4 {v(r)}, {s(srd_,4)}, {s(soff)} offen{o} lds")
                    stage_tok[beta] = t
                out.append(f)
        grp(sM0X, [DX, DX + 1, DX + 2, DX + 3], SRD_X, sSX)
        grp(sM0B, [DB, DB + 1], SRD_B, sSX)
        grp(sM0W, [DW, DW + 1, DW + 2], SRD_W, sSW)
        return out

    def dma_blockA(kap):
        base = (kap >> 1) * SLOT + (kap & 1) * 16384
        out = [lambda: kb_scalars(kap)]

        def f0():
            A.salu(f"s_add_u32 m0, {s(sM0X)}, {base}")
        out.append(f0)
        for e in range(4):
            def f(e=e):
                o = f" offset:{1024*e}" if e else ""
                t = A.vdma(f"buffer_load_dwordx4 {v(DA+e)}, {s(SRD_W,4)}, {s(sSW)} offen{o} lds")
                stage_tok[("A", kap)] = t
            out.append(f)
        return out

    for f in dma_stage(0):
        f()

    srd(SRD_A2, P_WS, WS_W2)
    srd(SRD_W2, P_WS, WS_G - WS_W2 + 8192, WS_W2)
    srd(SRD_DBG, P_DBG, 256)
    srd(SRD_WD, P_WD, 1792 * 1024)
    A.salu(f"s_lshl_b32 {s(sT0)}, {s(sW)}, 5")
    A.salu(f"s_add_u32 {s(sT0)}, {s(sT0)}, {s(sFB)}")
    A.valu(f"v_lshrrev_b32 {v(t4)}, 2, {v(vL)}")
    A.valu(f"v_add_u32 {v(t4)}, {s(sT0)}, {v(t4)}")
    A.valu(f"v_lshlrev_b32 {v(t4)}, 10, {v(t4)}")
    A.valu(f"v_and_b32 {v(t5)}, 3, {v(vL)}")
    A.valu(f"v_lshl_add_u32 {v(t4)}, {v(t5)}, 4, {v(t4)}")
    A.salu(f"s_lshl_b32 {s(sT0)}, {s(sC)}, 6")
    A.valu(f"v_add_u32 {v(t4)}, {s(sT0)}, {v(t4)}")
    A.valu(f"v_add_u32 {v(t5)}, {16*1024-1024}, {v(t4)}")
    A.salu(f"s_lshl_b32 {s(sT0)}, {s(sW)}, 11")
    A.salu(f"s_add_u32 m0, {s(sT0)}, {LDS_T}")
    A.vdma(f"buffer_load_dwordx4 {v(t4)}, {s(SRD_WD,4)}, 0 offen lds")
    wd_tok = A.vdma(f"buffer_load_dwordx4 {v(t5)}, {s(SRD_WD,4)}, 0 offen offset:1024 lds")
    CF = PA0
    GX = PA0 + 4
    GW = PA0 + 12
    sS, sN = sT2, sT3
    A.salu(f"s_lshl_b32 {s(sT0)}, {s(sC)}, 4")
    A.salu(f"s_add_u32 {s(sT0)}, {s(sT0)}, {s(sJ)}")
    A.salu(f"s_lshl_b32 {s(sT0)}, {s(sT0)}, 2")
    A.salu(f"s_add_u32 {s(sT0)}, {s(sT0)}, {s(sW)}")
    A.salu(f"s_lshr_b32 {s(sS)}, {s(sT0)}, 4")
    A.salu(f"s_and_b32 {s(sN)}, {s(sT0)}, 15")
    A.salu(f"s_and_b32 {s(sT0)}, {s(sS)}, 1")
    A.salu(f"s_cmp_eq_u32 {s(sT0)}, 0")
    A.salu(f"s_cselect_b32 {s(P_CRE)}, {s(P_CRE)}, {s(P_CIM)}")
    A.salu(f"s_cselect_b32 {s(P_CRE+1)}, {s(P_CRE+1)}, {s(P_CIM+1)}")
    A.valu(f"v_and_b32 {v(t4)}, 31, {v(vL)}")
    A.salu(f"s_lshl_b32 {s(sT0)}, {s(sN)}, 5")
    A.valu(f"v_add_u32 {v(t4)}, {s(sT0)}, {v(t4)}")
    A.valu(f"v_lshlrev_b32 {v(t4)}, 10, {v(t4)}")
    A.valu(f"v_lshrrev_b32 {v(t5)}, 5, {v(vL)}")
    A.valu(f"v_lshl_add_u32 {v(t4)}, {v(t5)}, 4, {v(t4)}")
    A.salu(f"s_lshr_b32 {s(sT0)}, {s(sS)}, 1")
    A.salu(f"s_lshl_b32 {s(sT0)}, {s(sT0)}, 5")
    A.valu(f"v_add_u32 {v(t4)}, {s(sT0)}, {v(t4)}")
    A.vload(f"global_load_dwordx4 {v(CF,4)}, {v(t4)}, {s(P_CRE,2)}")
    vCD = PA0 + 16
    A.salu(f"s_lshr_b32 {s(sT0)}, {s(sN)}, 1")
    A.salu(f"s_mul_i32 {s(sT0)}, {s(sT0)}, 176")
    A.salu(f"s_add_u32 {s(sT0)}, {s(sT0)}, {s(sS)}")
    A.salu(f"s_lshl_b32 {s(sT0)}, {s(sT0)}, 1")
    A.salu(f"s_and_b32 {s(sT1)}, {s(sN)}, 1")
    A.salu(f"s_add_u32 {s(sT0)}, {s(sT0)}, {s(sT1)}")
    A.salu(f"s_lshl_b32 {s(sT0)}, {s(sT0)}, 10")
    A.valu(f"v_lshl_add_u32 {v(vCD)}, {v(vL)}, 4, {s(sT0)}")
    sGR = 14
    A.salu(f"s_lshl_b32 {s(sT0)}, {s(sC)}, 7")
    A.salu(f"s_lshl_b32 {s(sT1)}, {s(sJ)}, 3")
    A.salu(f"s_add_u32 {s(sT0)}, {s(sT0)}, {s(sT1)}")
    A.salu(f"s_lshl_b32 {s(sT1)}, {s(sW)}, 1")
    A.salu(f"s_add_u32 {s(sGR)}, {s(sT0)}, {s(sT1)}")
    A.salu(f"s_lshl_b32 {s(sT0)}, {s(sGR)}, 10")
    A.valu(f"v_lshlrev_b32 {v(t4)}, 4, {v(vL)}")
    A.vload(f"buffer_load_dwordx4 {v(GX,4)}, {v(t4)}, {s(SRD_X,4)}, {s(sT0)} offen")
    A.vload(f"buffer_load_dwordx4 {v(GX+4,4)}, {v(t4)}, {s(SRD_X,4)}, {s(sT0)} offen offset:1024")
    A.vload(f"global_load_dwordx4 {v(GW,4)}, {v(t4)}, {s(P_GW,2)}")

    for b_ in (1, 2, 3):
        for f in dma_stage(b_):
            f()
    A.stamp(3)

    rho, bb, g4 = T, T + 1, T + 2
    A.valu(f"v_and_b32 {v(rho)}, 31, {v(vL)}")
    A.valu(f"v_lshrrev_b32 {v(bb)}, 5, {v(vL)}")
    A.valu(f"v_bfe_u32 {v(g4)}, {v(vL)}, 1, 3")
    A.valu(f"v_xor_b32 {v(g4)}, {v(g4)}, {v(bb)}")
    A.valu(f"v_lshlrev_b32 {v(g4)}, 4, {v(g4)}")
    A.valu(f"v_lshl_add_u32 {v(g4)}, {v(rho)}, 7, {v(g4)}")
    A.salu(f"s_lshl_b32 {s(sT0)}, {s(sI)}, 13")
    A.salu(f"s_lshl_b32 {s(sT1)}, {s(sJJ)}, 12")
    A.salu(f"s_add_u32 {s(sT0)}, {s(sT0)}, {s(sT1)}")
    A.salu(f"s_add_u32 {s(sT1)}, {s(sT1)}, 16384")
    for s_ in range(4):
        A.valu(f"v_xor_b32 {v(t4)}, {32*s_}, {v(g4)}")
        A.valu(f"v_add_u32 {v(XA+s_)}, {s(sT0)}, {v(t4)}")
        A.valu(f"v_xor_b32 {v(XA+4+s_)}, 0x1000, {v(XA+s_)}")
        A.valu(f"v_add_u32 {v(SA+s_)}, {s(sT1)}, {v(t4)}")
        A.valu(f"v_add_u32 {v(XA+8+s_)}, {2*SLOT}, {v(XA+s_)}")
        A.valu(f"v_add_u32 {v(XA+12+s_)}, {2*SLOT}, {v(XA+4+s_)}")
        A.valu(f"v_add_u32 {v(SA+4+s_)}, {2*SLOT}, {v(SA+s_)}")
    mat, kr, c8 = T + 3, T + 4, T + 5
    A.valu(f"v_bfe_u32 {v(mat)}, {v(vL)}, 4, 1")
    A.valu(f"v_bfe_u32 {v(kr)}, {v(vL)}, 2, 2")
    A.valu(f"v_lshl_add_u32 {v(kr)}, {v(bb)}, 3, {v(kr)}")
    A.valu(f"v_and_b32 {v(c8)}, 3, {v(vL)}")
    A.valu(f"v_lshlrev_b32 {v(c8)}, 3, {v(c8)}")
    A.valu(f"v_mul_u32_u24 {v(T+6)}, 6144, {v(mat)}")
    A.valu(f"v_add_u32 {v(T+6)}, {v(T+6)}, {v(c8)}")
    A.valu(f"v_add_u32 {v(T+6)}, 24576, {v(T+6)}")
    A.valu(f"v_lshlrev_b32 {v(T+7)}, 2, {v(mat)}")
    A.valu(f"v_mul_u32_u24 {v(T+11)}, 3, {v(kr)}")
    for tile in range(2):
        for h in range(2):
            d = BA + 2 * tile + h
            if tile == 0:
                A.valu(f"v_add_u32 {v(d)}, {s(sJJ)}, {v(T+11)}")
                if h:
                    A.valu(f"v_add_u32 {v(d)}, 12, {v(d)}")
            else:
                A.valu(f"v_add_u32 {v(d)}, {2+12*h}, {v(T+11)}")
            A.valu(f"v_xor_b32 {v(d)}, {v(d)}, {v(T+7)}")
            A.valu(f"v_lshl_add_u32 {v(d)}, {v(d)}, 5, {v(T+6)}")
            A.valu(f"v_add_u32 {v(d+4)}, {2*SLOT}, {v(d)}")
    A.valu(f"v_bfe_u32 {v(T+6)}, {v(vL)}, 3, 2")
    A.salu(f"s_lshl_b32 {s(sT0)}, {s(sJJ)}, 1")
    A.valu(f"v_xor_b32 {v(T+6)}, {s(sT0)}, {v(T+6)}")
    A.valu(f"v_lshl_add_u32 {v(T+6)}, {v(T+6)}, 5, {v(c8)}")
    A.valu(f"v_lshl_add_u32 {v(T+6)}, {v(kr)}, 7, {v(T+6)}")
    A.valu(f"v_lshl_add_u32 {v(AA)}, {v(mat)}, 13, {v(T+6)}")
    A.valu(f"v_xor_b32 {v(AA+1)}, 32, {v(AA)}")
    A.valu(f"v_add_u32 {v(AA+2)}, {2*SLOT}, {v(AA)}")
    A.valu(f"v_add_u32 {v(AA+3)}, {2*SLOT}, {v(AA+1)}")
    vWT = PA0 + 17
    A.valu(f"v_bfe_u32 {v(T+6)}, {v(vL)}, 2, 2")
    A.valu(f"v_lshl_add_u32 {v(T+6)}, {v(bb)}, 2, {v(T+6)}")
    A.valu(f"v_lshl_add_u32 {v(T+6)}, {v(T+6)}, 6, {v(c8)}")
    A.valu(f"v_lshl_add_u32 {v(T+6)}, {v(mat)}, 5, {v(T+6)}")
    A.salu(f"s_lshl_b32 {s(sT0)}, {s(sW)}, 11")
    A.salu(f"s_add_u32 {s(sT0)}, {s(sT0)}, {LDS_T}")
    A.valu(f"v_add_u32 {v(vWT)}, {s(sT0)}, {v(T+6)}")

    A.valu(f"v_lshrrev_b32 {v(t4)}, 3, {v(vL)}")
    A.salu(f"s_lshl_b32 {s(sT0)}, {s(sJJ)}, 5")
    A.valu(f"v_add_u32 {v(t4)}, {s(sT0)}, {v(t4)}")
    A.valu(f"v_mul_u32_u24 {v(t4)}, 3584, {v(t4)}")
    A.valu(f"v_bfe_u32 {v(t5)}, {v(vL)}, 1, 2")
    A.valu(f"v_bfe_u32 {v(T+6)}, {v(vL)}, 4, 1")
    A.valu(f"v_xor_b32 {v(t5)}, {v(t5)}, {v(T+6)}")
    A.salu(f"s_lshl_b32 {s(sT0)}, {s(sI)}, 1")
    A.valu(f"v_xor_b32 {v(t5)}, {s(sT0)}, {v(t5)}")
    A.valu(f"v_lshl_add_u32 {v(t4)}, {v(t5)}, 5, {v(t4)}")
    A.valu(f"v_and_b32 {v(t5)}, 1, {v(vL)}")
    A.valu(f"v_lshl_add_u32 {v(t4)}, {v(t5)}, 4, {v(t4)}")
    A.salu(f"s_lshl_b32 {s(sT0)}, {s(sFA)}, 1")
    A.valu(f"v_add_u32 {v(DA)}, {s(sT0)}, {v(t4)}")
    for e in range(1, 4):
        A.valu(f"v_add_u32 {v(DA+e)}, {e*(28672-1024)}, {v(DA)}")

    A.valu(f"v_bfe_u32 {v(t4)}, {v(vL)}, 2, 1")
    A.valu(f"v_lshlrev_b32 {v(t4)}, 4, {v(t4)}")
    A.valu(f"v_bfe_u32 {v(t5)}, {v(vL)}, 3, 2")
    A.valu(f"v_lshl_add_u32 {v(t4)}, {v(t5)}, 2, {v(t4)}")
    A.valu(f"v_and_b32 {v(t5)}, 3, {v(vL)}")
    A.valu(f"v_add_u32 {v(t4)}, {v(t4)}, {v(t5)}")
    A.valu(f"v_and_b32 {v(t5)}, 32, {v(vL)}")
    A.valu(f"v_add_u32 {v(t4)}, {v(t4)}, {v(t5)}")
    sMB = 15
    A.salu(f"s_lshl_b32 {s(sT0)}, {s(sC)}, 1")
    A.salu(f"s_add_u32 {s(sT0)}, {s(sT0)}, {s(sI)}")
    A.salu(f"s_mul_i32 {s(sMB)}, {s(sT0)}, {TILE_BYTES}")
    A.salu(f"s_lshl_b32 {s(sT1)}, {s(sJJ)}, 10")
    A.salu(f"s_add_u32 {s(sT0)}, {s(sMB)}, {s(sT1)}")
    A.valu(f"v_lshl_add_u32 {v(vST)}, {v(t4)}, 4, {s(sT0)}")
    A.valu(f"v_xor_b32 {v(vST+1)}, 0x400, {v(vST)}")
    A.salu(f"s_and_b32 {s(sT2)}, {s(sJ)}, 3")
    A.salu(f"s_lshl_b32 {s(sT0)}, {s(sJJ)}, 4")
    A.salu(f"s_add_u32 {s(sT0)}, {s(sT0)}, {s(sFB)}")
    A.salu(f"s_add_u32 {s(sT1)}, {s(sT0)}, 64")
    A.salu(f"s_cmp_gt_u32 {s(sT2)}, {s(sJJ)}")
    A.salu(f"s_cselect_b32 {s(sT0)}, {s(sT0)}, {s(sT1)}")
    A.salu(f"s_lshl_b32 {s(sT0)}, {s(sT0)}, 7")
    A.salu(f"s_add_u32 {s(sFT)}, {s(sT0)}, 131072")
    A.salu(f"s_add_u32 {s(sT0)}, {s(sFB)}, 32")
    A.salu(f"s_add_u32 {s(sT1)}, {s(sT0)}, 64")
    A.salu(f"s_cmp_gt_u32 {s(sT2)}, 2")
    A.salu(f"s_cselect_b32 {s(sT0)}, {s(sT0)}, {s(sT1)}")
    A.salu(f"s_lshl_b32 {s(sT0)}, {s(sT0)}, 7")
    A.salu(f"s_add_u32 {s(sFT+1)}, {s(sT0)}, 131072")
    A.salu(f"s_lshl_b32 {s(sT0)}, {s(sJJ)}, 5")
    A.salu(f"s_add_u32 {s(sT0)}, {s(sT0)}, {s(sFA)}")
    A.salu(f"s_lshl_b32 {s(sT0)}, {s(sT0)}, 7")
    A.salu(f"s_add_u32 {s(sFA0)}, {s(sT0)}, 131072")
    A.salu(f"s_lshl_b32 {s(sT0)}, {s(sC)}, 3")
    A.salu(f"s_mov_b64 {s(sWANT,2)}, 1")
    A.salu(f"s_lshl_b64 {s(sWANT,2)}, {s(sWANT,2)}, {s(sT0)}")
    A.salu(f"s_sub_u32 {s(sWANT)}, {s(sWANT)}, 1")
    A.salu(f"s_subb_u32 {s(sWANT+1)}, {s(sWANT+1)}, 0")
    A.salu(f"s_cmp_ge_u32 {s(sC)}, 8")
    A.salu(f"s_cselect_b64 {s(sWANT+2,2)}, {s(sWANT,2)}, 0")
    A.salu(f"s_cselect_b64 {s(sWANT,2)}, -1, {s(sWANT,2)}")
    for k in range(4):
        A.salu(f"s_and_b32 {s(sWANT+k)}, {s(sWANT+k)}, 0x01010101")

    fill = []

    def run_fill(n):
        for _ in range(n):
            if not fill:
                return
            fill.pop(0)()

    def V(text):
        return lambda: A.valu(text)

    def cmul(dr, di, ar, ai, br, bi, tmp):
        return [V(f"v_mul_f32 {v(tmp)}, {v(ar)}, {v(br)}"),
                V(f"v_mul_f32 {v(tmp+1)}, {v(ar)}, {v(bi)}"),
                V(f"v_fma_f32 {v(tmp)}, -{v(ai)}, {v(bi)}, {v(tmp)}"),
                V(f"v_fma_f32 {v(di)}, {v(ai)}, {v(br)}, {v(tmp+1)}"),
                V(f"v_mov_b32 {v(dr)}, {v(tmp)}")]

    def csq(dr, di, ar, ai, tmp):
        return [V(f"v_mul_f32 {v(tmp)}, {v(ai)}, {v(ai)}"),
                V(f"v_mul_f32 {v(tmp+1)}, {v(ar)}, {v(ai)}"),
                V(f"v_fma_f32 {v(dr)}, {v(ar)}, {v(ar)}, -{v(tmp)}"),
                V(f"v_add_f32 {v(di)}, {v(tmp+1)}, {v(tmp+1)}")]

    Q = T + 12
    lre, lim, ldt = PRM, PRM + 1, PRM + 2
    pf = []
    pf += [V(f"v_lshlrev_b32 {v(lre)}, 16, {v(lre)}"), V(f"v_lshlrev_b32 {v(lim)}, 16, {v(lim)}"),
           V(f"v_lshlrev_b32 {v(ldt)}, 16, {v(ldt)}"),
           V(f"v_mul_f32 {v(ldt)}, {LOG2E}, {v(ldt)}"), V(f"v_exp_f32 {v(ldt)}, {v(ldt)}"),
           V(f"v_cvt_pk_bf16_f32 {v(ldt)}, {v(ldt)}, {v(ldt)}"), V(f"v_lshlrev_b32 {v(ldt)}, 16, {v(ldt)}"),
           V(f"v_mul_f32 {v(Q)}, {v(ldt)}, {v(lre)}"), V(f"v_mul_f32 {v(Q+1)}, {v(ldt)}, {v(lim)}"),
           V(f"v_mul_f32 {v(Q)}, {LOG2E}, {v(Q)}"), V(f"v_exp_f32 {v(Q)}, {v(Q)}"),
           V(f"v_mul_f32 {v(Q+1)}, {INV2PI}, {v(Q+1)}"),
           V(f"v_rndne_f32 {v(Q+2)}, {v(Q+1)}"), V(f"v_sub_f32 {v(Q+1)}, {v(Q+1)}, {v(Q+2)}"),
           V(f"v_cos_f32 {v(Q+2)}, {v(Q+1)}"), V(f"v_sin_f32 {v(Q+3)}, {v(Q+1)}"),
           V(f"v_mul_f32 {v(LAM)}, {v(Q)}, {v(Q+2)}"), V(f"v_mul_f32 {v(LAM+1)}, {v(Q)}, {v(Q+3)}"),
           V(f"v_mul_f32 {v(Q)}, {v(lre)}, {v(lre)}"), V(f"v_fma_f32 {v(Q)}, {v(lim)}, {v(lim)}, {v(Q)}"),
           V(f"v_rcp_f32 {v(Q)}, {v(Q)}"),
           V(f"v_add_f32 {v(Q+1)}, -1.0, {v(LAM)}"),
           V(f"v_mul_f32 {v(Q+2)}, {v(Q+1)}, {v(lre)}"), V(f"v_fma_f32 {v(Q+2)}, {v(LAM+1)}, {v(lim)}, {v(Q+2)}"),
           V(f"v_mul_f32 {v(Q+3)}, {v(LAM+1)}, {v(lre)}"), V(f"v_fma_f32 {v(Q+3)}, -{v(Q+1)}, {v(lim)}, {v(Q+3)}"),
           V(f"v_mul_f32 {v(COEF)}, {v(Q+2)}, {v(Q)}"), V(f"v_mul_f32 {v(COEF+1)}, {v(Q+3)}, {v(Q)}")]
    pf += csq(Q + 4, Q + 5, LAM, LAM + 1, Q)
    pf += csq(Q + 6, Q + 7, Q + 4, Q + 5, Q)
    pf += csq(Q + 4, Q + 5, Q + 6, Q + 7, Q)
    pf += csq(L16, L16 + 1, Q + 4, Q + 5, Q)
    pf += csq(Q + 4, Q + 5, L16, L16 + 1, Q)
    pf += csq(Q + 6, Q + 7, Q + 4, Q + 5, Q)
    pf += csq(L128, L128 + 1, Q + 6, Q + 7, Q)
    pf += [V(f"v_bfe_u32 {v(Q)}, {v(vL)}, 4, 1"), V(f"v_xor_b32 {v(Q)}, {s(sJJ)}, {v(Q)}"),
           V(f"v_lshrrev_b32 {v(Q+1)}, 5, {v(vL)}"), V(f"v_lshl_add_u32 {v(vSEG)}, {v(Q)}, 1, {v(Q+1)}"),
           lambda: A.salu(f"s_lshl_b32 {s(sV)}, {s(sI)}, 2"),
           V(f"v_add_u32 {v(vSEG)}, {s(sV)}, {v(vSEG)}"),
           V(f"v_and_b32 {v(Q)}, 1, {v(vSEG)}"), V(f"v_cmp_eq_u32 vcc, 1, {v(Q)}"),
           V(f"v_mov_b32 {v(Q+1)}, 1.0"), V(f"v_mov_b32 {v(Q+2)}, 0"),
           V(f"v_cndmask_b32 {v(LS)}, {v(Q+1)}, {v(L16)}, vcc"), V(f"v_cndmask_b32 {v(LS+1)}, {v(Q+2)}, {v(L16+1)}, vcc"),
           V(f"v_and_b32 {v(Q)}, 2, {v(vSEG)}"), V(f"v_cmp_eq_u32 vcc, 2, {v(Q)}"),
           V(f"v_cndmask_b32 {v(Q+4)}, {v(Q+1)}, {v(Q+4)}, vcc"), V(f"v_cndmask_b32 {v(Q+5)}, {v(Q+2)}, {v(Q+5)}, vcc"),
           V(f"v_and_b32 {v(Q)}, 4, {v(vSEG)}"), V(f"v_cmp_eq_u32 vcc, 4, {v(Q)}"),
           V(f"v_cndmask_b32 {v(Q+6)}, {v(Q+1)}, {v(Q+6)}, vcc"), V(f"v_cndmask_b32 {v(Q+7)}, {v(Q+2)}, {v(Q+7)}, vcc")]
    pf += cmul(LS, LS + 1, LS, LS + 1, Q + 4, Q + 5, Q + 8)
    pf += cmul(LS, LS + 1, LS, LS + 1, Q + 6, Q + 7, Q + 8)
    pf += [V(f"v_and_b32 {v(Q)}, 15, {v(vL)}"), lambda: A.salu(f"s_lshl_b32 {s(sV)}, {s(sJJ)}, 7"),
           V(f"v_lshl_add_u32 {v(Q)}, {v(Q)}, 3, {s(sV)}"),
           V(f"v_add_u32 {v(vEXR)}, {LDS_EX}, {v(Q)}"),
           V(f"v_lshl_add_u32 {v(vEXW)}, {v(vSEG)}, 8, {v(vEXR)}"),
           lambda: A.salu(f"s_sub_u32 {s(sV)}, 15, {s(sC)}"), lambda: A.salu(f"s_lshl_b32 {s(sV)}, {s(sV)}, 8"),
           V(f"v_add_u32 {v(Q+1)}, {s(sV)}, {v(Q)}"), V(f"v_mov_b32 {v(Q+2)}, 0x10000"),
           V(f"v_cmp_eq_u32 vcc, 0, {v(vSEG)}"),
           V(f"v_add_u32 {v(vSS)}, 256, {v(Q+1)}"),
           V(f"v_cndmask_b32 {v(vEO)}, {v(Q+2)}, {v(Q+1)}, vcc")]

    wf = []
    WB = Q + 10
    WB = T + 32
    wf.append(lambda: A.vstore(f"buffer_store_dwordx4 {v(CF,4)}, {v(vCD)}, {s(SRD_W2,4)}, 0 offen", v(CF, 4)))
    wf.append(lambda: A.wait_tok(wd_tok))
    for e in range(2):
        for h in range(2):
            wf.append(lambda e=e, h=h: A.ds_read(f"ds_read_b64_tr_b16 {v(WB+4*e+2*h,2)}, {v(vWT)} offset:{1024*e+512*h}"))
    wf += [lambda: A.salu(f"s_lshr_b32 {s(sV)}, {s(sC)}, 1"), lambda: A.salu(f"s_mul_i32 {s(sV)}, {s(sV)}, 176"),
           lambda: A.salu(f"s_mul_i32 {s(sV+1)}, {s(sJ)}, 7"), lambda: A.salu(f"s_add_u32 {s(sV)}, {s(sV)}, {s(sV+1)}"),
           lambda: A.salu(f"s_lshl_b32 {s(sV+1)}, {s(sW)}, 1"), lambda: A.salu(f"s_add_u32 {s(sV)}, {s(sV)}, {s(sV+1)}"),
           lambda: A.salu(f"s_add_u32 {s(sV)}, {s(sV)}, 64"), lambda: A.salu(f"s_lshl_b32 {s(sV)}, {s(sV)}, 1"),
           lambda: A.salu(f"s_and_b32 {s(sV+1)}, {s(sC)}, 1"), lambda: A.salu(f"s_add_u32 {s(sV)}, {s(sV)}, {s(sV+1)}"),
           lambda: A.salu(f"s_lshl_b32 {s(sV)}, {s(sV)}, 10"),
           lambda: A.salu(f"s_add_u32 {s(sV+1)}, {s(sV)}, 2048"),
           lambda: A.salu(f"s_cmp_eq_u32 {s(sW)}, 3"),
           lambda: A.salu(f"s_cselect_b32 {s(sV+1)}, 0x1000000, {s(sV+1)}"),
           V(f"v_lshlrev_b32 {v(vCD)}, 4, {v(vL)}"),
           lambda: A.vstore(f"buffer_store_dwordx4 {v(WB,4)}, {v(vCD)}, {s(SRD_W2,4)}, {s(sV)} offen", v(WB, 4)),
           lambda: A.vstore(f"buffer_store_dwordx4 {v(WB+4,4)}, {v(vCD)}, {s(SRD_W2,4)}, {s(sV+1)} offen", v(WB + 4, 4))]
    def merged(fs):
        def f():
            for x in fs:
                x()
        return f
    i0 = len(wf) - 5
    wf = wf[:i0] + [merged(wf[i0:i0 + 2])] + wf[i0 + 2:]

    gf = []
    GWF = PA0 + 18
    GT = PA0 + 26
    for k in range(4):
        gf.append(V(f"v_lshlrev_b32 {v(GWF+2*k)}, 16, {v(GW+k)}"))
        gf.append(V(f"v_and_b32 {v(GWF+2*k+1)}, 0xffff0000, {v(GW+k)}"))
    for row in range(2):
        acc = GT + 4 + row
        for k in range(4):
            x_ = GX + 4 * row + k
            gf += [V(f"v_lshlrev_b32 {v(GT)}, 16, {v(x_)}"), V(f"v_and_b32 {v(GT+1)}, 0xffff0000, {v(x_)}"),
                   V(f"v_mul_f32 {v(GT)}, {v(GT)}, {v(GWF+2*k)}"), V(f"v_mul_f32 {v(GT+1)}, {v(GT+1)}, {v(GWF+2*k+1)}"),
                   V(f"v_cvt_pk_bf16_f32 {v(GT+2)}, {v(GT)}, {v(GT+1)}"),
                   V(f"v_lshlrev_b32 {v(GT)}, 16, {v(GT+2)}"), V(f"v_and_b32 {v(GT+1)}, 0xffff0000, {v(GT+2)}")]
            if k == 0:
                gf.append(V(f"v_add_f32 {v(acc)}, {v(GT)}, {v(GT+1)}"))
            else:
                gf += [V(f"v_add_f32 {v(acc)}, {v(acc)}, {v(GT)}"), V(f"v_add_f32 {v(acc)}, {v(acc)}, {v(GT+1)}")]
    for ctl in ("row_shr:1 row_mask:0xf bank_mask:0xf", "row_shr:2 row_mask:0xf bank_mask:0xf", "row_shr:4 row_mask:0xf bank_mask:0xf",
                "row_shr:8 row_mask:0xf bank_mask:0xf", "row_bcast:15 row_mask:0xa bank_mask:0xf", "row_bcast:31 row_mask:0xc bank_mask:0xf"):
        for row in range(2):
            acc = GT + 4 + row
            gf.append(V(f"v_add_f32_dpp {v(acc)}, {v(acc)}, {v(acc)} {ctl}"))
    a0, a1 = GT + 4, GT + 5
    gf += [V(f"v_cvt_pk_bf16_f32 {v(GT)}, {v(a0)}, {v(a1)}"),
           V(f"v_lshlrev_b32 {v(a0)}, 16, {v(GT)}"), V(f"v_and_b32 {v(a1)}, 0xffff0000, {v(GT)}"),
           V(f"v_mul_f32 {v(a0)}, {NLOG2E}, {v(a0)}"), V(f"v_mul_f32 {v(a1)}, {NLOG2E}, {v(a1)}"),
           V(f"v_exp_f32 {v(a0)}, {v(a0)}"), V(f"v_exp_f32 {v(a1)}, {v(a1)}"),
           V(f"v_add_f32 {v(a0)}, 1.0, {v(a0)}"), V(f"v_add_f32 {v(a1)}, 1.0, {v(a1)}"),
           V(f"v_rcp_f32 {v(a0)}, {v(a0)}"), V(f"v_rcp_f32 {v(a1)}, {v(a1)}"),
           V(f"v_cvt_pk_bf16_f32 {v(GT)}, {v(a0)}, {v(a1)}"),
           V(f"v_lshlrev_b32 {v(a0)}, 16, {v(GT)}"), V(f"v_and_b32 {v(a1)}, 0xffff0000, {v(GT)}"),
           V(f"v_sub_f32 {v(GT)}, 1.0, {v(a0)}"), V(f"v_sub_f32 {v(GT+1)}, 1.0, {v(a1)}"),
           V(f"v_cvt_pk_bf16_f32 {v(GT+2)}, {v(a0)}, {v(GT)}"), V(f"v_cvt_pk_bf16_f32 {v(GT+3)}, {v(a1)}, {v(GT+1)}"),
           lambda: A.salu(f"s_lshl_b32 {s(sV)}, {s(sGR)}, 2"),
           lambda: A.salu(f"s_add_u32 {s(sV)}, {s(sV)}, {WS_G - WS_W2}"),
           V(f"v_mov_b32 {v(GT)}, {s(sV)}"), V(f"v_mov_b32 {v(GT+1)}, 0x1000000"),
           V(f"v_cmp_eq_u32 vcc, 63, {v(vL)}"),
           V(f"v_cndmask_b32 {v(GT)}, {v(GT+1)}, {v(GT)}, vcc"),
           lambda: A.vstore(f"buffer_store_dwordx2 {v(GT+2,2)}, {v(GT)}, {s(SRD_W2,4)}, 0 offen", v(GT + 2, 2))]

    def flag_store():
        A.salu(f"s_lshl_b32 {s(sV)}, {s(sJ)}, 4")
        A.salu(f"s_add_u32 {s(sV)}, {s(sV)}, {s(sC)}")
        A.valu(f"v_mov_b32 {v(T+40)}, {s(sV)}")
        A.valu(f"v_mov_b32 {v(T+41)}, 0x10000")
        A.valu(f"v_cmp_eq_u32 vcc, 0, v0")
        A.valu(f"v_mov_b32 {v(T+42)}, 1")
        A.valu(f"v_cndmask_b32 {v(T+40)}, {v(T+41)}, {v(T+40)}, vcc")
        A.vstore(f"buffer_store_byte {v(T+42)}, {v(T+40)}, {s(SRD_DBG,4)}, 0 offen sc1", v(T + 42))

    def ffn_epi(acc, tau, soff, extra=0, tmp=T + 40):
        out = []
        for e in range(0, 8, 2):
            g0, g1, u0, u1 = acc + e, acc + e + 1, acc + 8 + e, acc + 9 + e
            out += [V(f"v_mul_f32 {v(tmp)}, {NLOG2E}, {v(g0)}"), V(f"v_mul_f32 {v(tmp+1)}, {NLOG2E}, {v(g1)}"),
                    V(f"v_exp_f32 {v(tmp)}, {v(tmp)}"), V(f"v_exp_f32 {v(tmp+1)}, {v(tmp+1)}"),
                    V(f"v_mul_f32 {v(u0)}, {v(g0)}, {v(u0)}"), V(f"v_mul_f32 {v(u1)}, {v(g1)}, {v(u1)}"),
                    V(f"v_add_f32 {v(tmp)}, 1.0, {v(tmp)}"), V(f"v_add_f32 {v(tmp+1)}, 1.0, {v(tmp+1)}"),
                    V(f"v_rcp_f32 {v(tmp)}, {v(tmp)}"), V(f"v_rcp_f32 {v(tmp+1)}, {v(tmp+1)}"),
                    V(f"v_mul_f32 {v(u0)}, {v(u0)}, {v(tmp)}"), V(f"v_mul_f32 {v(u1)}, {v(u1)}, {v(tmp+1)}"),
                    V(f"v_cvt_pk_bf16_f32 {v(acc+e//2)}, {v(u0)}, {v(u1)}")]
        o = f" offset:{extra}" if extra else ""
        out.append(lambda: A.vstore(f"buffer_store_dwordx4 {v(acc,4)}, {v(vST+tau)}, {s(SRD_A2,4)}, {s(soff)} offen{o}", v(acc, 4)))
        return out

    def p1_reads(ks):
        beta, s_ = ks >> 2, ks & 3
        st = (beta >> 1) & 1
        so = (beta & 1) * SLOT
        fb = FB + (ks & 1) * 12
        xa = ks * 4
        return [
            lambda: A.ds_read(f"ds_read_b128 {a(xa,4)}, {v(XA+8*st+s_)} offset:{so}"),
            lambda: A.ds_read(f"ds_read_b128 {v(fb,4)}, {v(SA+4*st+s_)} offset:{so}"),
            lambda: A.ds_read(f"ds_read_b128 {a(128+xa,4)}, {v(XA+8*st+4+s_)} offset:{so}"),
            lambda: A.ds_read(f"ds_read_b64_tr_b16 {v(fb+4,2)}, {v(BA+4*st+0)} offset:{so+1536*s_}"),
            lambda: A.ds_read(f"ds_read_b64_tr_b16 {v(fb+6,2)}, {v(BA+4*st+1)} offset:{so+1536*s_}"),
            lambda: A.ds_read(f"ds_read_b64_tr_b16 {v(fb+8,2)}, {v(BA+4*st+2)} offset:{so+1536*s_}"),
            lambda: A.ds_read(f"ds_read_b64_tr_b16 {v(fb+10,2)}, {v(BA+4*st+3)} offset:{so+1536*s_}"),
        ]

    PD = 3

    def p2_reads(n):
        tile, ks = n >> 5, n & 31
        kap, s_ = ks >> 2, ks & 3
        slot = kap >> 1
        st = slot >> 1
        off = (slot & 1) * SLOT + (kap & 1) * 16384 + s_ * 2048
        fb = FB + (n % 6) * 4
        return [lambda h=h: A.ds_read(f"ds_read_b64_tr_b16 {v(fb+2*h,2)}, {v(AA+2*st+tile)} offset:{off+512*h}") for h in range(2)]

    A.wait_tok(stage_tok[0])
    A.stamp(4)
    A.barrier()
    for f in p1_reads(0):
        f()
    flag_store()
    fill += pf + wf + gf
    must = []

    def gap(nread, reads, nfill):
        for _ in range(nread):
            if reads:
                reads.pop(0)()
        k = nfill
        while must and k > 0:
            must.pop(0)()
            k -= 1
        run_fill(k)

    for ks in range(32):
        beta, s_ = ks >> 2, ks & 3
        fb = FB + (ks & 1) * 12
        x0, x1 = a(ks * 4, 4), a(128 + ks * 4, 4)
        C = "0" if ks == 0 else None
        A.mfma(v(S0, 16), x0, v(fb, 4), C)
        if s_ == 3:
            nb = beta + 1
            if nb < 8:
                A.wait_tok(stage_tok[nb])
            else:
                A.wait_tok(stage_tok[("A", 1)])
            A.wait(lg=0)
            A.barrier()
            if stamps and nb in (4, 8):
                A.stamp(5 if nb == 4 else 6)
            if beta + 4 < 8:
                must += dma_stage(beta + 4)
            else:
                must += dma_blockA(2 * (beta - 4)) + dma_blockA(2 * (beta - 4) + 1)
        if ks < 31:
            reads = p1_reads(ks + 1)
        else:
            reads = []
            for n in range(PD):
                reads += p2_reads(n)
        gap(2, reads, fill_p1)
        A.mfma(v(S1, 16), x1, v(fb, 4), C)
        gap(2, reads, fill_p1)
        A.mfma(v(BJ0, 16), v(fb + 4, 4), x0, C)
        gap(1, reads, fill_p1)
        A.mfma(v(BJ1, 16), v(fb + 4, 4), x1, C)
        gap(1, reads, fill_p1)
        A.mfma(v(B2, 16), v(fb + 8, 4), x0, C)
        gap(1, reads, fill_p1)
        assert not reads
    assert not fill, f"P1 fillers left {len(fill)}"

    RE, IM = S0, S1
    H = T
    sf1 = []
    for r in range(16):
        sf1.append(V(f"v_permlane16_swap_b32 {v(S0+r)}, {v(S1+r)}"))
    hr, hi, nr, ni = T, T + 1, T + 2, T + 3
    cur = (RE, IM)
    pp = [(T, T + 1), (T + 2, T + 3)]
    for r in range(1, 16):
        n_ = pp[r & 1]
        sf1 += [V(f"v_fma_f32 {v(n_[0])}, {v(LAM)}, {v(cur[0])}, {v(RE+r)}"),
                V(f"v_fma_f32 {v(n_[1])}, {v(LAM)}, {v(cur[1])}, {v(IM+r)}"),
                V(f"v_fma_f32 {v(n_[0])}, -{v(LAM+1)}, {v(cur[1])}, {v(n_[0])}"),
                V(f"v_fma_f32 {v(n_[1])}, {v(LAM+1)}, {v(cur[0])}, {v(n_[1])}")]
        cur = n_
    sf1 += cmul(T + 4, T + 5, cur[0], cur[1], COEF, COEF + 1, T + 6)
    sf1.append(lambda: A.ds_write(f"ds_write_b64 {v(vEXW)}, {v(T+4,2)}"))
    sf2 = []
    EXB = T + 8
    for m in range(8):
        sf2.append(lambda m=m: A.ds_read(f"ds_read_b64 {v(EXB+2*m,2)}, {v(vEXR)} offset:{256*m}"))
    sf2 += [V(f"v_mov_b32 {v(PFX)}, 0"), V(f"v_mov_b32 {v(PFX+1)}, 0")]
    cur = (EXB, EXB + 1)
    for m in range(1, 8):
        sf2 += [V(f"v_cmp_eq_u32 vcc, {m}, {v(vSEG)}")]
        n_ = pp[m & 1]
        sf2 += [V(f"v_fma_f32 {v(n_[0])}, {v(L16)}, {v(cur[0])}, {v(EXB+2*m)}"),
                V(f"v_fma_f32 {v(n_[1])}, {v(L16)}, {v(cur[1])}, {v(EXB+2*m+1)}"),
                V(f"v_cndmask_b32 {v(PFX)}, {v(PFX)}, {v(cur[0])}, vcc"),
                V(f"v_cndmask_b32 {v(PFX+1)}, {v(PFX+1)}, {v(cur[1])}, vcc"),
                V(f"v_fma_f32 {v(n_[0])}, -{v(L16+1)}, {v(cur[1])}, {v(n_[0])}"),
                V(f"v_fma_f32 {v(n_[1])}, {v(L16+1)}, {v(cur[0])}, {v(n_[1])}")]
        cur = n_
    sf2 += [V(f"v_min_u32 {v(T+4)}, -2, {v(cur[0])}"), V(f"v_min_u32 {v(T+5)}, -2, {v(cur[1])}"),
            lambda: A.vstore(f"buffer_store_dwordx2 {v(T+4,2)}, {v(vEO)}, {s(SRD_E,4)}, 0 offen sc1", v(T + 4, 2))]
    sf3 = []
    for r in range(16):
        sf3 += [V(f"v_mul_f32 {v(T+6)}, {v(COEF)}, {v(RE+r)}"), V(f"v_mul_f32 {v(T+7)}, {v(COEF)}, {v(IM+r)}"),
                V(f"v_fma_f32 {v(T+6)}, -{v(COEF+1)}, {v(IM+r)}, {v(T+6)}"),
                V(f"v_fma_f32 {v(IM+r)}, {v(COEF+1)}, {v(RE+r)}, {v(T+7)}"),
                V(f"v_mov_b32 {v(RE+r)}, {v(T+6)}")]
    TWa = T + 24
    TRa = T + 28
    ta = []
    ta += [V(f"v_and_b32 {v(T+6)}, 3, {v(vSEG)}"), V(f"v_lshlrev_b32 {v(T+6)}, 1, {v(T+6)}"),
           V(f"v_and_b32 {v(T+7)}, 7, {v(vL)}"), V(f"v_xor_b32 {v(T+6)}, {v(T+6)}, {v(T+7)}"),
           V(f"v_lshlrev_b32 {v(T+6)}, 4, {v(T+6)}"),
           V(f"v_and_b32 {v(T+7)}, 15, {v(vL)}"), V(f"v_lshl_add_u32 {v(T+6)}, {v(T+7)}, 7, {v(T+6)}"),
           lambda: A.salu(f"s_lshl_b32 {s(sV)}, {s(sW)}, 12"), lambda: A.salu(f"s_add_u32 {s(sV)}, {s(sV)}, {LDS_T}"),
           V(f"v_add_u32 {v(TWa)}, {s(sV)}, {v(T+6)}"), V(f"v_xor_b32 {v(TWa+1)}, 16, {v(TWa)}"),
           V(f"v_bfe_u32 {v(T+6)}, {v(vL)}, 4, 1"), V(f"v_lshlrev_b32 {v(T+6)}, 1, {v(T+6)}"),
           V(f"v_bfe_u32 {v(T+7)}, {v(vL)}, 1, 1"), V(f"v_add_u32 {v(T+6)}, {v(T+6)}, {v(T+7)}"),
           V(f"v_bfe_u32 {v(T+7)}, {v(vL)}, 2, 2"),
           V(f"v_xor_b32 {v(T+6)}, {v(T+6)}, {v(T+7)}"), V(f"v_lshlrev_b32 {v(T+6)}, 4, {v(T+6)}"),
           V(f"v_lshl_add_u32 {v(T+6)}, {v(T+7)}, 7, {v(T+6)}"),
           V(f"v_lshrrev_b32 {v(T+7)}, 5, {v(vL)}"), V(f"v_lshl_add_u32 {v(T+6)}, {v(T+7)}, 10, {v(T+6)}"),
           V(f"v_and_b32 {v(T+7)}, 1, {v(vL)}"), V(f"v_lshl_add_u32 {v(T+6)}, {v(T+7)}, 3, {v(T+6)}"),
           V(f"v_add_u32 {v(TRa)}, {s(sV)}, {v(T+6)}"),
           V(f"v_xor_b32 {v(TRa+1)}, 64, {v(TRa)}")]

    def flags_check():
        A.salu(f"s_lshl_b32 {s(sV)}, {s(sJ)}, 4")
        A.valu(f"v_mov_b32 {v(T+6)}, {s(sV)}")
        A.salu(f"s_mov_b32 {s(sCNT)}, 0")
        return A.vload(f"buffer_load_dwordx4 {v(EL,4)}, {v(T+6)}, {s(SRD_DBG,4)}, 0 offen sc1")

    def flags_test():
        A.label(f"{name}_fl_chk")
        for k in range(4):
            A.valu(f"v_readfirstlane_b32 {s(sV+k)}, {v(EL+k)}")
        A.salu(f"s_andn2_b64 {s(sV,2)}, {s(sWANT,2)}, {s(sV,2)}")
        A.salu(f"s_andn2_b64 {s(sV+2,2)}, {s(sWANT+2,2)}, {s(sV+2,2)}")
        A.salu(f"s_or_b64 {s(sV,2)}, {s(sV,2)}, {s(sV+2,2)}")
        A.salu(f"s_cbranch_scc1 {name}_fl_retry")
        A.label(f"{name}_fl_ok")
        tail.append(f"""{name}_fl_retry:
    s_add_u32 {s(sCNT)}, {s(sCNT)}, 1
    s_cmp_gt_u32 {s(sCNT)}, 0x40000
    s_cbranch_scc1 {name}_fl_ok
    s_sleep 2
    s_lshl_b32 {s(sV)}, {s(sJ)}, 4
    v_mov_b32 {v(EL+4)}, {s(sV)}
    buffer_load_dwordx4 {v(EL,4)}, {v(EL+4)}, {s(SRD_DBG,4)}, 0 offen sc1
    s_waitcnt vmcnt(0)
    s_branch {name}_fl_chk
""")

    def e_loads():
        for m in range(15):
            o = f" offset:{256*m}" if m else ""
            A.vload(f"buffer_load_dwordx2 {v(EL+2*m,2)}, {v(vSS)}, {s(SRD_E,4)}, 0 offen{o} sc1")
        A.salu(f"s_mov_b32 {s(sCNT)}, 0")

    def e_test():
        A.wait_tok(A.pend[("v", EL + 28)])
        for r in range(30):
            A.pend.pop(("v", EL + r), None)
        A.label(f"{name}_e_chk")
        A.valu(f"v_max3_u32 {v(T+6)}, {v(EL)}, {v(EL+1)}, {v(EL+2)}")
        for k in range(3, 29, 2):
            A.valu(f"v_max3_u32 {v(T+6)}, {v(T+6)}, {v(EL+k)}, {v(EL+k+1)}")
        A.valu(f"v_max_u32 {v(T+6)}, {v(T+6)}, {v(EL+29)}")
        A.valu(f"v_cmp_eq_u32 vcc, -1, {v(T+6)}")
        A.nop(5)
        A.salu(f"s_cbranch_vccnz {name}_e_retry")
        A.label(f"{name}_e_ok")
        ld = "".join(f"    buffer_load_dwordx2 {v(EL+2*m,2)}, {v(vSS)}, {s(SRD_E,4)}, 0 offen offset:{256*m} sc1\n" for m in range(15))
        tail.append(f"""{name}_e_retry:
    s_add_u32 {s(sCNT)}, {s(sCNT)}, 1
    s_cmp_gt_u32 {s(sCNT)}, 0x40000
    s_cbranch_scc1 {name}_e_ok
    s_sleep 2
{ld}    s_waitcnt vmcnt(0)
    s_branch {name}_e_chk
""")

    sf4 = []
    cur = (EL + 28, EL + 29)
    for m in range(13, -1, -1):
        n_ = pp[m & 1]
        sf4 += [V(f"v_fma_f32 {v(n_[0])}, {v(L128)}, {v(cur[0])}, {v(EL+2*m)}"),
                V(f"v_fma_f32 {v(n_[1])}, {v(L128)}, {v(cur[1])}, {v(EL+2*m+1)}"),
                V(f"v_fma_f32 {v(n_[0])}, -{v(L128+1)}, {v(cur[1])}, {v(n_[0])}"),
                V(f"v_fma_f32 {v(n_[1])}, {v(L128+1)}, {v(cur[0])}, {v(n_[1])}")]
        cur = n_
    sf4 += [V(f"v_fma_f32 {v(PFX)}, {v(LS)}, {v(cur[0])}, {v(PFX)}"),
            V(f"v_fma_f32 {v(PFX+1)}, {v(LS)}, {v(cur[1])}, {v(PFX+1)}"),
            V(f"v_fma_f32 {v(PFX)}, -{v(LS+1)}, {v(cur[1])}, {v(PFX)}"),
            V(f"v_fma_f32 {v(PFX+1)}, {v(LS+1)}, {v(cur[0])}, {v(PFX+1)}")]
    cur = (PFX, PFX + 1)
    PK = T + 8
    for r in range(16):
        sf4 += [V(f"v_fma_f32 {v(RE+r)}, {v(LAM)}, {v(cur[0])}, {v(RE+r)}"),
                V(f"v_fma_f32 {v(IM+r)}, {v(LAM)}, {v(cur[1])}, {v(IM+r)}"),
                V(f"v_fma_f32 {v(RE+r)}, -{v(LAM+1)}, {v(cur[1])}, {v(RE+r)}"),
                V(f"v_fma_f32 {v(IM+r)}, {v(LAM+1)}, {v(cur[0])}, {v(IM+r)}")]
        cur = (RE + r, IM + r)
        if r & 1:
            sf4 += [V(f"v_cvt_pk_bf16_f32 {v(PK+r//2)}, {v(RE+r-1)}, {v(RE+r)}"),
                    V(f"v_cvt_pk_bf16_f32 {v(PK+8+r//2)}, -{v(IM+r-1)}, -{v(IM+r)}")]
    for part in range(2):
        for half in range(2):
            sf4.append(lambda part=part, half=half: A.ds_write(
                f"ds_write_b128 {v(TWa+half)}, {v(PK+8*part+4*half,4)} offset:{2048*part}"))
    sf4.append(lambda: A.wait(lg=0))
    HF = S0
    for part in range(2):
        for rt in range(2):
            for h in range(2):
                sf4.append(lambda part=part, rt=rt, h=h: A.ds_read(
                    f"ds_read_b64_tr_b16 {v(HF+8*part+4*rt+2*h,2)}, {v(TRa+(rt ^ h))} offset:{2048*part+512*h}"))
    sf4 += [lambda: A.salu(f"s_lshl_b32 {s(sV)}, {s(sJ)}, 1"), lambda: A.salu(f"s_add_u32 {s(sV)}, {s(sV)}, {s(sJJ)}"),
            lambda: A.salu(f"s_lshl_b32 {s(sV)}, {s(sV)}, 12"), lambda: A.salu(f"s_add_u32 {s(sV)}, {s(sV)}, {s(sMB)}"),
            V(f"v_lshlrev_b32 {v(T+6)}, 4, {v(vL)}")]
    for part in range(2):
        for rt in range(2):
            o = 2048 * part + 1024 * rt
            os_ = f" offset:{o}" if o else ""
            sf4.append(lambda part=part, rt=rt, os_=os_: A.vstore(
                f"buffer_store_dwordx4 {v(HF+8*part+4*rt,4)}, {v(T+6)}, {s(SRD_A2,4)}, {s(sV)} offen{os_}", v(HF + 8 * part + 4 * rt, 4)))

    fill += sf1
    ex_done = False
    for n in range(64):
        tile, ks = n >> 5, n & 31
        fb = FB + (n % 6) * 4
        acc0, acc1 = (PA0, PA1) if tile == 0 else (BJ0, BJ1)
        x0, x1 = a(ks * 4, 4), a(128 + ks * 4, 4)
        C = "0" if ks == 0 else None
        nn = n + PD
        if nn < 32 and nn % 8 == 0:
            if nn == 16:
                run_fill(len(fill))
            A.wait_tok(stage_tok[("A", nn // 4 + 1)])
            A.wait(lg=0)
            A.barrier()
            if nn == 16:
                fill += sf2 + ffn_epi(BJ0, 0, sFT) + ffn_epi(BJ1, 1, sFT) + ffn_epi(B2, 0, sFT + 1) + ta + sf3
        if n == 32:
            k = 0
            while any(f is epi_marker for f in fill):
                run_fill(1)
            A.stamp(7)
            fill += [flags_check] + ffn_epi(PA0, 0, sFA0) + [flags_test, e_loads] + ffn_epi(PA1, 1, sFA0) + [e_test] + sf4
        if nn == 16:
            epi_marker = lambda: None
            idx = len(sf2) + 2 * 53
            fill.insert(idx, epi_marker)
        reads = p2_reads(nn) if nn < 64 else []
        A.mfma(v(acc0, 16), v(fb, 4), x0, C)
        gap(1, reads, fill_p2)
        A.mfma(v(acc1, 16), v(fb, 4), x1, C)
        gap(1, reads, fill_p2)
    A.stamp(8)
    run_fill(len(fill))
    for f in ffn_epi(BJ0, 0, sFA0, 2048) + ffn_epi(BJ1, 1, sFA0, 2048, tmp=T + 42):
        f()
    A.stamp(9)
    A.stamp(10, True)
    A.dump_stamps(11, P_WS, 32 << 20, sW, T)
    A.label(f"{name}_end")
    A.salu("s_endpgm")
    for t in tail:
        A.raw(t)
    desc = f""".amdhsa_kernel {name}
  .amdhsa_next_free_vgpr 512
  .amdhsa_next_free_sgpr 102
  .amdhsa_accum_offset 256
  .amdhsa_group_segment_fixed_size 0
  .amdhsa_float_denorm_mode_32 3
  .amdhsa_kernarg_size 136
  .amdhsa_user_sgpr_count 2
  .amdhsa_user_sgpr_kernarg_segment_ptr 1
  .amdhsa_system_sgpr_workgroup_id_x 1
.end_amdhsa_kernel
"""
    print(f"k1: {A.n_inst} instrs, {A.n_nop} nops")
    return A.text(), desc, 163840


if __name__ == "__main__":
    t, d, l = gen_k1()
    open("k1.txt", "w").write(t)
```

```python
from asmgen import Asm, v, a, s

WS_A2 = 0
WS_W2 = 0xB00000
WS_G = 0xDC0000
WS_E = 0xDD0000
TILE_BYTES = 176 * 2048


def gen_k3(name="k3_kernel", D=12, exp=None, stamps=False):
    A = Asm()
    A.stamps = stamps
    A.raw(f".globl {name}\n.p2align 8\n.type {name},@function\n{name}:")
    S_X, S_DS, S_OUT, S_WS = 4, 6, 8, 10
    SRD_A, SRD_W, SRD_X, SRD_O, SRD_G, SRD_D = 12, 16, 20, 24, 28, 32
    sW, sM, sN, sT0, sT1, sOFF = 36, 37, 38, 39, 40, 41
    sC = 42
    A.salu("s_cmp_ge_u32 s2, 256")
    A.salu(f"s_cbranch_scc1 {name}_end")
    A.stamp(0, True)
    A.stamp(1)
    A.smem(f"s_load_dwordx2 {s(S_X,2)}, s[0:1], 0")
    A.smem(f"s_load_dwordx2 {s(S_DS,2)}, s[0:1], 64")
    A.smem(f"s_load_dwordx2 {s(S_OUT,2)}, s[0:1], 112")
    A.smem(f"s_load_dwordx2 {s(S_WS,2)}, s[0:1], 128")
    ACC_A, ACC_B = 0, 64
    vLANE, vA0, vA1, vW0, vW1 = 128, 129, 130, 131, 132
    vWR = 133
    vRD = 136
    vXO, vOO, vGO, vDO = 137, 138, 139, 140
    vX = 144
    vG = 160
    vD = 176
    vT = 180
    vP = 192
    vT2 = 240
    A.valu(f"v_lshrrev_b32 {v(vT)}, 6, v0")
    A.valu(f"v_and_b32 {v(vLANE)}, 63, v0")
    A.valu(f"v_readfirstlane_b32 {s(sW)}, {v(vT)}")
    A.salu(f"s_and_b32 {s(sT0)}, s2, 7")
    A.salu(f"s_lshr_b32 {s(sT1)}, s2, 3")
    A.salu(f"s_lshl_b32 {s(sM)}, {s(sT0)}, 2")
    A.salu(f"s_and_b32 {s(sT0)}, {s(sT1)}, 3")
    A.salu(f"s_add_u32 {s(sM)}, {s(sM)}, {s(sT0)}")
    A.salu(f"s_lshr_b32 {s(sN)}, {s(sT1)}, 2")
    if exp == "same":
        A.salu(f"s_mov_b32 {s(sM)}, 0")
        A.salu(f"s_mov_b32 {s(sN)}, 0")
    if exp == "samexcd":
        A.salu(f"s_and_b32 {s(sM)}, s2, 7")
        A.salu(f"s_and_b32 {s(sN)}, s2, 7")
    if exp == "sameA":
        A.salu(f"s_and_b32 {s(sM)}, s2, 7")
    if exp == "lin":
        A.salu(f"s_lshr_b32 {s(sM)}, s2, 3")
        A.salu(f"s_and_b32 {s(sN)}, s2, 7")
    if exp == "m8n4":
        A.salu(f"s_and_b32 {s(sT0)}, s2, 3")
        A.salu(f"s_lshl_b32 {s(sM)}, {s(sT0)}, 3")
        A.salu(f"s_and_b32 {s(sT0)}, {s(sT1)}, 7")
        A.salu(f"s_add_u32 {s(sM)}, {s(sM)}, {s(sT0)}")
        A.salu(f"s_lshr_b32 {s(sN)}, {s(sT1)}, 3")
        A.salu(f"s_and_b32 {s(sT0)}, s2, 4")
        A.salu(f"s_add_u32 {s(sN)}, {s(sN)}, {s(sT0)}")
    if exp == "empty":
        A.salu(f"s_branch {name}_end")
    sMI, sNI = 50, 51
    A.salu(f"s_lshr_b32 {s(sMI)}, {s(sW)}, 1")
    A.salu(f"s_and_b32 {s(sNI)}, {s(sW)}, 1")
    A.valu(f"v_lshlrev_b32 {v(vT)}, 4, {v(vLANE)}")
    A.salu(f"s_lshl_b32 {s(sT0)}, {s(sMI)}, 10")
    A.valu(f"v_add_u32 {v(vA0)}, {s(sT0)}, {v(vT)}")
    A.valu(f"v_xor_b32 {v(vA1)}, 0x400, {v(vA0)}")
    A.salu(f"s_lshl_b32 {s(sT0)}, {s(sNI)}, 10")
    A.valu(f"v_add_u32 {v(vW0)}, {s(sT0)}, {v(vT)}")
    A.valu(f"v_xor_b32 {v(vW1)}, 0x400, {v(vW0)}")
    A.salu(f"s_mul_i32 {s(sT0)}, {s(sM)}, {TILE_BYTES}")
    A.salu(f"s_add_u32 {s(SRD_A)}, {s(S_WS)}, {s(sT0)}")
    A.salu(f"s_addc_u32 {s(SRD_A+1)}, {s(S_WS+1)}, 0")
    A.salu(f"s_mov_b32 {s(SRD_A+2)}, {TILE_BYTES}")
    A.salu(f"s_mov_b32 {s(SRD_A+3)}, 0x20000")
    A.salu(f"s_mul_i32 {s(sT0)}, {s(sN)}, {TILE_BYTES}")
    A.salu(f"s_add_u32 {s(sT0)}, {s(sT0)}, {WS_W2}")
    A.salu(f"s_add_u32 {s(SRD_W)}, {s(S_WS)}, {s(sT0)}")
    A.salu(f"s_addc_u32 {s(SRD_W+1)}, {s(S_WS+1)}, 0")
    A.salu(f"s_mov_b32 {s(SRD_W+2)}, {TILE_BYTES}")
    A.salu(f"s_mov_b32 {s(SRD_W+3)}, 0x20000")
    A.salu(f"s_lshl_b32 {s(sOFF)}, {s(sW)}, 15")

    NS = 44

    def issue_loads(q):
        if q == 16:
            A.salu(f"s_mul_i32 {s(sOFF)}, {s(sW)}, {28*2048}")
            A.salu(f"s_add_u32 {s(sOFF)}, {s(sOFF)}, {64*2048}")
        elif q > 0 and q % 2 == 0:
            A.salu(f"s_add_u32 {s(sOFF)}, {s(sOFF)}, 4096")
        b = (q % D) * 16
        off = (q % 2) * 2048
        o = f" offset:{off}" if off else ""
        A.vload(f"buffer_load_dwordx4 {a(b,4)}, {v(vA0)}, {s(SRD_A,4)}, {s(sOFF)} offen{o}")
        A.vload(f"buffer_load_dwordx4 {a(b+8,4)}, {v(vW0)}, {s(SRD_W,4)}, {s(sOFF)} offen{o}")
        A.vload(f"buffer_load_dwordx4 {a(b+4,4)}, {v(vA1)}, {s(SRD_A,4)}, {s(sOFF)} offen{o}")
        A.vload(f"buffer_load_dwordx4 {a(b+12,4)}, {v(vW1)}, {s(SRD_W,4)}, {s(sOFF)} offen{o}")

    A.stamp(2)
    for q in range(D):
        issue_loads(q)

    A.salu(f"s_mov_b32 {s(SRD_X)}, {s(S_X)}")
    A.salu(f"s_mov_b32 {s(SRD_X+1)}, {s(S_X+1)}")
    A.salu(f"s_mov_b32 {s(SRD_X+2)}, {2048*512*2}")
    A.salu(f"s_mov_b32 {s(SRD_X+3)}, 0x20000")
    A.salu(f"s_mov_b32 {s(SRD_O)}, {s(S_OUT)}")
    A.salu(f"s_mov_b32 {s(SRD_O+1)}, {s(S_OUT+1)}")
    A.salu(f"s_mov_b32 {s(SRD_O+2)}, {2048*512*4}")
    A.salu(f"s_mov_b32 {s(SRD_O+3)}, 0x20000")
    A.salu(f"s_add_u32 {s(SRD_G)}, {s(S_WS)}, {WS_G}")
    A.salu(f"s_addc_u32 {s(SRD_G+1)}, {s(S_WS+1)}, 0")
    A.salu(f"s_mov_b32 {s(SRD_G+2)}, 8192")
    A.salu(f"s_mov_b32 {s(SRD_G+3)}, 0x20000")
    A.salu(f"s_mov_b32 {s(SRD_D)}, {s(S_DS)}")
    A.salu(f"s_mov_b32 {s(SRD_D+1)}, {s(S_DS+1)}")
    A.salu(f"s_mov_b32 {s(SRD_D+2)}, 1024")
    A.salu(f"s_mov_b32 {s(SRD_D+3)}, 0x20000")
    A.salu(f"s_lshl_b32 {s(sT0)}, {s(sM)}, 6")
    A.salu(f"s_lshl_b32 {s(sT1)}, {s(sMI)}, 5")
    A.salu(f"s_add_u32 {s(sT0)}, {s(sT0)}, {s(sT1)}")
    A.valu(f"v_lshrrev_b32 {v(vT)}, 5, {v(vLANE)}")
    A.valu(f"v_lshl_add_u32 {v(vT)}, {v(vT)}, 2, {s(sT0)}")
    A.salu(f"s_lshl_b32 {s(sT0)}, {s(sN)}, 6")
    A.salu(f"s_lshl_b32 {s(sT1)}, {s(sNI)}, 5")
    A.salu(f"s_add_u32 {s(sT0)}, {s(sT0)}, {s(sT1)}")
    A.valu(f"v_and_b32 {v(vT+1)}, 31, {v(vLANE)}")
    A.valu(f"v_add_u32 {v(vT+1)}, {s(sT0)}, {v(vT+1)}")
    A.valu(f"v_lshlrev_b32 {v(vDO)}, 1, {v(vT+1)}")
    A.valu(f"v_lshl_add_u32 {v(vXO)}, {v(vT)}, 10, {v(vDO)}")
    A.valu(f"v_lshlrev_b32 {v(vOO)}, 1, {v(vXO)}")
    A.valu(f"v_lshlrev_b32 {v(vGO)}, 2, {v(vT)}")
    for r in range(16):
        A.valu(f"v_mov_b32 {v(vX+r)}, 0")
    A.valu(f"v_mov_b32 {v(vD)}, 0")
    for k in range(1, 4):
        A.salu(f"s_mov_b32 {s(sC+k)}, {k*8192}")
    for k in range(1, 4):
        A.salu(f"s_xor_b32 {s(sT0)}, {s(sW)}, {k}")
        A.salu(f"s_mul_i32 {s(sT0)}, {s(sT0)}, 12288")
        A.salu(f"s_add_u32 {s(sT0)}, {s(sT0)}, {(k-1)*4096}")
        A.valu(f"v_lshl_add_u32 {v(vWR+k-1)}, {v(vLANE)}, 4, {s(sT0)}")
    A.salu(f"s_mul_i32 {s(sT0)}, {s(sW)}, 12288")
    A.valu(f"v_lshl_add_u32 {v(vRD)}, {v(vLANE)}, 4, {s(sT0)}")

    fillers = []

    side = []
    for aa in range(4):
        so = "0" if aa == 0 else s(sC + aa)
        for c in range(4):
            o = f" offset:{c*1024}" if c else ""
            side.append(f"buffer_load_short_d16_hi {v(vX+4*aa+c)}, {v(vXO)}, {s(SRD_X,4)}, {so} offen{o}")
    for aa in range(4):
        o = f" offset:{aa*32}" if aa else ""
        side.append(f"buffer_load_dwordx4 {v(vG+4*aa,4)}, {v(vGO)}, {s(SRD_G,4)}, 0 offen{o}")
    side.append(f"buffer_load_short_d16_hi {v(vD)}, {v(vDO)}, {s(SRD_D,4)}, 0 offen")

    def write_partials(acc, ldsbase):
        out = []
        for k in range(1, 4):
            for qq in range(4):
                out.append(lambda k=k, qq=qq: A.ds_write(
                    f"ds_write_b128 {v(vWR+k-1)}, {v(acc+16*k+4*qq,4)} offset:{ldsbase+qq*1024}"))
        return out

    def read_partials(ldsbase):
        out = []
        for k in range(3):
            for qq in range(4):
                out.append(lambda k=k, qq=qq: A.ds_read(
                    f"ds_read_b128 {v(vP+16*k+4*qq,4)}, {v(vRD)} offset:{ldsbase+k*4096+qq*1024}"))
        return out

    def sum_partials(acc):
        out = []
        for k in range(3):
            for r in range(0, 16, 2):
                out.append(lambda k=k, r=r: A.valu(
                    f"v_pk_add_f32 {v(acc+r,2)}, {v(acc+r,2)}, {v(vP+16*k+r,2)}"))
        return out

    def a_math():
        out = []
        for r in range(0, 16, 2):
            def f(r=r):
                A.valu(f"v_mul_f32 {v(vX+r)}, {v(vX+r)}, {v(vD)}")
                A.valu(f"v_mul_f32 {v(vX+r+1)}, {v(vX+r+1)}, {v(vD)}")
                A.valu(f"v_cvt_pk_bf16_f32 {v(vT)}, {v(vX+r)}, {v(vX+r+1)}")
                A.valu(f"v_lshlrev_b32 {v(vX+r)}, 16, {v(vT)}")
                A.valu(f"v_and_b32 {v(vX+r+1)}, 0xffff0000, {v(vT)}")
                for e in (r, r + 1):
                    A.valu(f"v_fma_f32 {v(ACC_A+e)}, 2.0, {v(ACC_A+e)}, {v(vX+e)}")
                    A.valu(f"v_lshlrev_b32 {v(vT+1)}, 16, {v(vG+e)}")
                    A.valu(f"v_mul_f32 {v(ACC_A+e)}, {v(ACC_A+e)}, {v(vT+1)}")
                    A.valu(f"v_and_b32 {v(vG+e)}, 0xffff0000, {v(vG+e)}")
            out.append(f)
        return out

    def run_fillers(n):
        for _ in range(n):
            if fillers:
                fillers.pop(0)()

    for q in range(NS):
        acc = ACC_A if q < 16 else ACC_B
        first = q == 0 or q == 16
        b = (q % D) * 16
        for k in range(4):
            mi, ni = k >> 1, k & 1
            d = v(acc + 16 * k, 16)
            A.mfma(d, a(b + 4 * mi, 4), a(b + 8 + 4 * ni, 4), "0" if first else None)
            run_fillers(1)
            if k == 0 and q in (0, 12, 24, 36):
                A.stamp(3 + q // 12)
        if q + D < NS:
            issue_loads(q + D)
        if side:
            A.vload(side.pop(0))
        if q == 17:
            fillers += write_partials(ACC_A, 0)
        if q == 24:
            assert not fillers
            A.wait(lg=0)
            A.barrier()
            fillers += read_partials(0)
        if q == 28:
            fillers += sum_partials(ACC_A)
        if q == 34:
            fillers += a_math()
    run_fillers(1000)
    A.stamp(7)
    for f in write_partials(ACC_B, 49152):
        f()
    A.wait(lg=0)
    A.barrier()
    for f in read_partials(49152):
        f()
    for f in sum_partials(ACC_B):
        f()
    for r in range(0, 16, 2):
        A.valu(f"v_cvt_pk_bf16_f32 {v(vT)}, {v(ACC_B+r)}, {v(ACC_B+r+1)}")
        A.valu(f"v_lshlrev_b32 {v(vT+1)}, 16, {v(vT)}")
        A.valu(f"v_and_b32 {v(vT+2)}, 0xffff0000, {v(vT)}")
        A.valu(f"v_mul_f32 {v(vT+1)}, {v(vT+1)}, {v(vG+r)}")
        A.valu(f"v_mul_f32 {v(vT+2)}, {v(vT+2)}, {v(vG+r+1)}")
        A.valu(f"v_cvt_pk_bf16_f32 {v(vT)}, {v(vT+1)}, {v(vT+2)}")
        A.valu(f"v_lshlrev_b32 {v(vT+1)}, 16, {v(vT)}")
        A.valu(f"v_and_b32 {v(vT+2)}, 0xffff0000, {v(vT)}")
        A.valu(f"v_add_f32 {v(ACC_A+r)}, {v(ACC_A+r)}, {v(vT+1)}")
        A.valu(f"v_add_f32 {v(ACC_A+r+1)}, {v(ACC_A+r+1)}, {v(vT+2)}")
        aa, c = r >> 2, r & 3
        so = aa * 16384 + (c >> 1) * 4096
        if so:
            A.salu(f"s_mov_b32 {s(sT0)}, {so}")
        sos = s(sT0) if so else "0"
        A.vstore(f"buffer_store_dword {v(ACC_A+r)}, {v(vOO)}, {s(SRD_O,4)}, {sos} offen", v(ACC_A + r))
        A.vstore(f"buffer_store_dword {v(ACC_A+r+1)}, {v(vOO)}, {s(SRD_O,4)}, {sos} offen offset:2048", v(ACC_A + r + 1))
    A.stamp(8)
    A.stamp(9, True)
    A.dump_stamps(10, S_WS, 32 << 20, sW, vT)
    A.label(f"{name}_end")
    A.salu("s_endpgm")
    desc = f""".amdhsa_kernel {name}
  .amdhsa_next_free_vgpr {256 + 16*D}
  .amdhsa_next_free_sgpr 102
  .amdhsa_accum_offset 256
  .amdhsa_group_segment_fixed_size 0
  .amdhsa_float_denorm_mode_32 3
  .amdhsa_kernarg_size 136
  .amdhsa_user_sgpr_count 2
  .amdhsa_user_sgpr_kernarg_segment_ptr 1
  .amdhsa_system_sgpr_workgroup_id_x 1
.end_amdhsa_kernel
"""
    return A.text(), desc, 98304


if __name__ == "__main__":
    t, d, l = gen_k3()
    print(t)
```

```python
import sys, os
sys.path.insert(0, os.path.dirname(__file__))
from gen_k3 import gen_k3

HDR = open("gated_mix__ssm_conv_s5__swiglu_ffn__prompt.s.ref").read().split("; Override launch")[0]

def compose(kernels, launches):
    out = HDR
    for name, grid, block, lds in launches:
        out += f"; @launch kernel={name} grid=({grid},1,1) block=({block},1,1) lds={lds}\n"
    out += '.amdgcn_target "amdgcn-amd-amdhsa--gfx950"\n.text\n'
    for t, d in kernels:
        out += t
    out += '.section .rodata,"a"\n'
    for t, d in kernels:
        out += ".p2align 6\n" + d
    return out

def build(path, **kw):
    ks, ls = [], []
    if kw.get("k1", True):
        from gen_k1 import gen_k1
        t, d, lds = gen_k1(**kw.get("k1args", {}))
        ks.append((t, d)); ls.append(("k1_kernel", 256, 256, lds))
    if kw.get("k3", True):
        t, d, lds = gen_k3(**kw.get("k3args", {}))
        ks.append((t, d)); ls.append(("k3_kernel", 256, 256, lds))
    open(path, "w").write(compose(ks, ls))

if __name__ == "__main__":
    which = sys.argv[1] if len(sys.argv) > 1 else "all"
    path = sys.argv[2] if len(sys.argv) > 2 else "gated_mix__ssm_conv_s5__swiglu_ffn__prompt.s"
    build(path, k1=which in ("all", "k1"), k3=which in ("all", "k3"))
    print("wrote", path, os.path.getsize(path))
```
